```python
import torch

def _softmax(x, axis=-1):
    return torch.softmax(x, dim=axis)

def _gelu(x):
    return torch.nn.functional.gelu(x, approximate='tanh')

def _silu(x):
    return torch.nn.functional.silu(x)

def _sigmoid(x):
    return torch.sigmoid(x)

def _layernorm(x, axis=-1, eps=1e-05):
    m = x.mean(dim=axis, keepdim=True)
    v = x.var(dim=axis, keepdim=True, unbiased=False)
    return (x - m) / torch.sqrt(v + eps)

def _scatter_add(tgt, idx, src, axis=0):
    return tgt.clone().index_add_(axis, idx, src)

def _segment_sum(src, seg, n):
    out = torch.zeros((n,) + src.shape[1:], dtype=src.dtype)
    return out.index_add_(0, seg, src)

def _pad(x, pw):
    flat = tuple((v for pair in reversed(pw) for v in pair))
    return torch.nn.functional.pad(x, flat)
kernel_name = 'standalone__dit_adaln_block__diffusion'

def setup_inputs():

    _w = lambda a: (lambda t: t.to(torch.bfloat16) if t.is_floating_point() else t)(torch.as_tensor(a))
    B, N, D = (2, 1024, 768)
    return {'x': _w((lambda *s: torch.randn(*s, dtype=torch.bfloat16) * 0.05)(B, N, D)), 'c': _w((lambda *s: torch.randn(*s, dtype=torch.bfloat16) * 0.2)(B, D)), 'wqkv': _w((lambda *s: torch.randn(*s, dtype=torch.bfloat16) * 0.05)(D, 3 * D)), 'wo': _w((lambda *s: torch.randn(*s, dtype=torch.bfloat16) * 0.05)(D, D)), 'w_mod': _w((lambda *s: torch.randn(*s, dtype=torch.bfloat16) * 0.2)(D, 6 * D))}

def reference(x, c, wqkv, wo, w_mod):
    B, N, D = x.shape
    mod = (_silu(c) @ w_mod).reshape(B, 6, 1, D)
    shift_a, scale_a, gate_a, shift_m, scale_m, gate_m = [mod[:, i] for i in range(6)]
    h = _layernorm(x, axis=-1) * (1 + scale_a) + shift_a
    qkv = h @ wqkv
    q, k, v = (qkv[..., :D].clone(), qkv[..., D:2 * D].clone(), qkv[..., 2 * D:].clone())
    p = _softmax(torch.einsum('bqd,bkd->bqk', q, k) * D ** (-0.5), axis=-1)
    a = torch.einsum('bqk,bkd->bqd', p, v) @ wo
    return x + gate_a * a
```

```python
B, N, D = 2, 1024, 768
X_BYTES = B*N*D*2
C_BYTES = B*D*2
WQKV_BYTES = D*3*D*2
WO_BYTES = D*D*2
WMOD_BYTES = D*6*D*2
OUT_BYTES = X_BYTES
WS_BYTES = 268435456

MOD_OFF = 0x0
H_OFF   = 0x100000
W_OFF   = 0x400000
T_OFF   = 0x700000
UT_OFF  = 0xA00000
P_OFF   = 0xD00000
MR_OFF  = 0x1100000
FLAG_OFF= 0x1200000

KARG = dict(x=0, c=8, wqkv=16, wo=24, wmod=32, out=40, dbg=48, ws=56)

class Asm:
    def __init__(self):
        self.L = []
        self.uid = 0
    def __call__(self, s=""):
        for ln in s.strip("\n").split("\n"):
            self.L.append("    " + ln.strip() if ln.strip() and not ln.strip().endswith(":") else ln.strip())
    def c(self, s):
        self.L.append("    ; " + s)
    def label(self, s):
        self.L.append(s + ":")
    def newlabel(self, p="L"):
        self.uid += 1
        return f"{p}_{self.uid}"
    def text(self):
        return "\n".join(self.L) + "\n"

def srd(a, sreg, ptr_lo, nbytes):
    a(f"s_mov_b32 s{sreg}, s{ptr_lo}")
    a(f"s_mov_b32 s{sreg+1}, s{ptr_lo+1}")
    a(f"s_mov_b32 s{sreg+2}, {hex(nbytes)}")
    a(f"s_mov_b32 s{sreg+3}, 0x20000")

def kernel_header(a, name):
    a.L.append(".text")
    a.L.append(f".globl {name}")
    a.L.append(".p2align 8")
    a.L.append(f".type {name},@function")
    a.L.append(f"{name}:")

def kernel_desc(a, name, vgpr, accum, sgpr=102):
    a.L.append('.section .rodata,"a"')
    a.L.append(".p2align 6")
    a.L.append(f".amdhsa_kernel {name}")
    a.L.append(f"  .amdhsa_next_free_vgpr {vgpr}")
    a.L.append(f"  .amdhsa_next_free_sgpr {sgpr}")
    a.L.append(f"  .amdhsa_accum_offset {accum}")
    a.L.append("  .amdhsa_group_segment_fixed_size 0")
    a.L.append("  .amdhsa_kernarg_size 64")
    a.L.append("  .amdhsa_user_sgpr_count 2")
    a.L.append("  .amdhsa_user_sgpr_kernarg_segment_ptr 1")
    a.L.append("  .amdhsa_system_sgpr_workgroup_id_x 1")
    a.L.append("  .amdhsa_float_denorm_mode_32 3")
    a.L.append(".end_amdhsa_kernel")

def vr(base, n=4):
    return f"v[{base}:{base+n-1}]"
def ar(base, n=4):
    return f"a[{base}:{base+n-1}]"
```

```python
from common import *

def emit_exit_guard(a, nwg, lab):
    a(f"s_cmp_ge_u32 s2, {nwg}")
    a(f"s_cbranch_scc1 {lab}")

def gen_mtask(a, tag, s_tau):
    LW, LS, LR = 0, 24576, 27648+512
    a.c("---- mod task ----")
    a(f"s_lshl_b32 s21, s{s_tau}, 5")
    a("v_lshrrev_b32 v1, 1, v63")
    a("v_mul_u32_u24 v1, 9216, v1")
    a("v_and_b32 v2, 1, v63")
    a("v_lshlrev_b32 v2, 4, v2")
    a("v_add_u32 v1, v1, v2")
    a("s_mul_i32 s22, s20, 192*9216")
    a("s_add_u32 s22, s22, s21")
    a("s_mul_i32 s23, s20, 192*32")
    a("v_and_b32 v3, 127, v0")
    a("v_mul_u32_u24 v3, 12, v3")
    a("v_lshrrev_b32 v4, 7, v0")
    a("v_mul_u32_u24 v4, 1536, v4")
    a("v_add_u32 v3, v3, v4")
    a("buffer_load_dwordx3 v[8:10], v3, s[12:15], 0 offen")
    for m in range(6):
        a(f"s_mov_b32 m0, s23")
        a(f"s_add_u32 s23, s23, 1024")
        a(f"buffer_load_dwordx4 v1, s[8:11], s22 offen lds")
        a(f"s_add_u32 s22, s22, {32*9216}")
    a("s_waitcnt vmcnt(6)")
    for i in range(3):
        a(f"v_lshlrev_b32 v{12+2*i}, 16, v{8+i}")
        a(f"v_and_b32 v{13+2*i}, 0xffff0000, v{8+i}")
    a("s_mov_b32 s24, 0xbfb8aa3b")
    for i in range(6):
        a(f"v_mul_f32 v{20+i}, s24, v{12+i}")
    for i in range(6):
        a(f"v_exp_f32 v{20+i}, v{20+i}")
    a("s_nop 0")
    for i in range(6):
        a(f"v_add_f32 v{20+i}, 1.0, v{20+i}")
    for i in range(6):
        a(f"v_rcp_f32 v{20+i}, v{20+i}")
    a("s_nop 0")
    for i in range(6):
        a(f"v_mul_f32 v{20+i}, v{20+i}, v{12+i}")
    for i in range(3):
        a(f"v_cvt_pk_bf16_f32 v{8+i}, v{20+2*i}, v{21+2*i}")
    a(f"v_add_u32 v3, {LS}, v3")
    for i in range(3):
        a(f"ds_write_b32 v3, v{8+i} offset:{4*i}")
    a("v_lshrrev_b32 v4, 4, v63")
    a("v_and_b32 v5, 1, v63")
    a("v_mul_u32_u24 v5, 1536, v5")
    a("v_lshlrev_b32 v6, 4, v4")
    a("v_add_u32 v5, v5, v6")
    a("s_mul_i32 s24, s20, 192*2")
    a(f"s_add_u32 s24, s24, {LS}")
    a("v_add_u32 v5, s24, v5")
    a("v_and_b32 v6, 15, v63")
    a("v_lshrrev_b32 v6, 2, v6")
    a("v_lshlrev_b32 v7, 3, v4")
    a("v_add_u32 v6, v6, v7")
    a("v_lshlrev_b32 v6, 5, v6")
    a("v_and_b32 v7, 3, v63")
    a("v_lshlrev_b32 v7, 3, v7")
    a("v_add_u32 v6, v6, v7")
    a("s_mul_i32 s24, s20, 192*32")
    a(f"v_add_u32 v6, s24, v6")
    a("s_waitcnt vmcnt(0) lgkmcnt(0)")
    a("s_barrier")
    for s in range(6):
        a(f"ds_read_b128 v[{12+4*(s%2)*2}:{15+4*(s%2)*2}], v5 offset:{64*s}")
        a(f"ds_read_b64_tr_b16 v[{16+8*(s%2)}:{17+8*(s%2)}], v6 offset:{1024*s}")
        a(f"ds_read_b64_tr_b16 v[{18+8*(s%2)}:{19+8*(s%2)}], v6 offset:{1024*s+128}")
        a("s_waitcnt lgkmcnt(0)")
        base=12+8*(s%2)
        c = "0" if s==0 else "v[32:35]"
        a(f"v_mfma_f32_16x16x32_bf16 v[32:35], v[{base}:{base+3}], v[{base+4}:{base+7}], {c}")
    a("s_nop 7")
    a("s_nop 1")
    a("v_and_b32 v6, 15, v63")
    a("v_lshlrev_b32 v6, 3, v6")
    a("s_lshl_b32 s24, s20, 7")
    a(f"s_add_u32 s24, s24, {LR}")
    a("v_add_u32 v6, s24, v6")
    a("s_mov_b64 s[26:27], exec")
    a("s_mov_b64 exec, 0xffff")
    a("ds_write_b64 v6, v[32:33]")
    a("s_mov_b64 exec, s[26:27]")
    a("s_waitcnt lgkmcnt(0)")
    a("s_barrier")
    lab = a.newlabel("mt_skip")
    a("s_cmp_eq_u32 s20, 0")
    a(f"s_cbranch_scc0 {lab}")
    a("v_and_b32 v6, 15, v63")
    a("v_lshrrev_b32 v7, 4, v63")
    a("v_and_b32 v7, 1, v7")
    a("v_lshlrev_b32 v8, 3, v6")
    a("v_lshlrev_b32 v9, 2, v7")
    a("v_add_u32 v8, v8, v9")
    a(f"v_add_u32 v8, {LR}, v8")
    for w in range(4):
        a(f"ds_read_b32 v{12+w}, v8 offset:{128*w}")
    a("s_waitcnt lgkmcnt(0)")
    a("v_add_f32 v12, v12, v13")
    a("v_add_f32 v14, v14, v15")
    a("v_add_f32 v12, v12, v14")
    a(f"s_sub_u32 s24, s{s_tau}, 48")
    a("s_cmp_lt_u32 s24, 48")
    a("s_cselect_b32 s24, 1.0, 0")
    a("v_add_f32 v12, s24, v12")
    a("v_mul_u32_u24 v7, 2304*4, v7")
    a("v_lshlrev_b32 v6, 2, v6")
    a("v_add_u32 v7, v7, v6")
    a(f"s_lshl_b32 s24, s{s_tau}, 6")
    a(f"s_add_u32 s24, s24, {MOD_OFF}")
    a("s_mov_b32 exec_lo, -1\ns_mov_b32 exec_hi, 0")
    a("buffer_store_dword v12, v7, s[16:19], s24 offen")
    a("s_mov_b64 exec, s[26:27]")
    a.label(lab)
    a("s_barrier")

def gen_k1(a):
    name="k1_kernel"
    kernel_header(a,name)
    emit_exit_guard(a,256,"k1_done")
    a("s_load_dwordx4 s[36:39], s[0:1], 8")
    a("s_load_dwordx4 s[40:43], s[0:1], 24")
    a("s_load_dwordx2 s[44:45], s[0:1], 56")
    a("v_and_b32 v63, 63, v0")
    a("v_lshrrev_b32 v1, 6, v0")
    a("s_and_b32 s30, s2, 7")
    a("v_readfirstlane_b32 s20, v1")
    a("s_lshr_b32 s31, s2, 3")
    a("s_waitcnt lgkmcnt(0)")
    srd(a,16,44,WS_BYTES)
    a("s_cmp_lt_u32 s31, 16")
    a("s_cbranch_scc1 k1_wrole")
    srd(a,8,42,WMOD_BYTES)
    srd(a,12,36,C_BYTES)
    a("s_sub_u32 s32, s31, 16")
    a("s_cmp_lt_u32 s32, 12")
    a("s_cbranch_scc0 k1_gate")
    a("s_lshr_b32 s33, s32, 2")
    a("s_lshl_b32 s33, s33, 3")
    a("s_add_u32 s33, s33, s30")
    a("s_lshl_b32 s33, s33, 2")
    a("s_and_b32 s34, s32, 3")
    a("s_add_u32 s33, s33, s34")
    a("s_mov_b32 s35, 1")
    a("s_branch k1_mloop")
    a.label("k1_gate")
    a("s_add_u32 s33, s30, 24")
    a("s_lshl_b32 s33, s33, 2")
    a("s_sub_u32 s34, s32, 12")
    a("s_add_u32 s33, s33, s34")
    a("s_cmp_lt_u32 s30, 4")
    a("s_cselect_b32 s35, 2, 1")
    a.label("k1_mloop")
    gen_mtask(a,"m",33)
    a("s_add_u32 s33, s33, 32")
    a("s_sub_u32 s35, s35, 1")
    a("s_cmp_lg_u32 s35, 0")
    a("s_cbranch_scc1 k1_mloop")
    a("s_branch k1_done")
    a.label("k1_wrole")
    a("s_lshr_b32 s32, s30, 2")
    a("s_lshr_b32 s33, s30, 1")
    a("s_and_b32 s33, s33, 1")
    a("s_lshl_b32 s33, s33, 2")
    a("s_lshr_b32 s34, s31, 2")
    a("s_add_u32 s33, s33, s34")
    a("s_and_b32 s34, s30, 1")
    a("s_lshl_b32 s34, s34, 2")
    a("s_and_b32 s35, s31, 3")
    a("s_add_u32 s34, s34, s35")
    srd(a,8,38,WQKV_BYTES)
    srd(a,12,40,WO_BYTES)
    a("v_lshrrev_b32 v1, 3, v63")
    a("v_and_b32 v2, 7, v63")
    a("v_lshrrev_b32 v3, 1, v1")
    a("v_xor_b32 v2, v2, v3")
    a("v_mul_u32_u24 v1, 4608, v1")
    a("v_lshlrev_b32 v3, 4, v2")
    a("v_add_u32 v4, v1, v3")
    a("v_xor_b32 v3, 64, v3")
    a("v_add_u32 v5, v1, v3")
    a("s_mul_i32 s21, s33, 96*4608")
    a("s_mul_i32 s22, s20, 24*4608")
    a("s_add_u32 s21, s21, s22")
    a("s_mul_i32 s22, s32, 3072")
    a("s_add_u32 s21, s21, s22")
    a("s_and_b32 s22, s20, 1")
    a("s_cmp_eq_u32 s22, 0")
    a("s_cselect_b64 vcc, -1, 0")
    a("v_cndmask_b32 v6, v5, v4, vcc")
    a("v_cndmask_b32 v7, v4, v5, vcc")
    a("v_mov_b32 v8, v6")
    a(f"v_add_u32 v7, {8*4608 - 1024}, v7")
    a(f"v_add_u32 v8, {16*4608 - 2048}, v8")
    a("s_cmp_eq_u32 s32, 0")
    a("s_cbranch_scc0 k1_w2setup")
    a("s_mul_i32 s23, s34, 96*4608")
    a("s_mul_i32 s22, s20, 24*4608")
    a("s_add_u32 s23, s23, s22")
    a("s_add_u32 s23, s23, 1536")
    a("v_mov_b32 v9, v6\nv_mov_b32 v10, v7\nv_mov_b32 v11, v8")
    a("s_branch k1_w1main")
    a.label("k1_w2setup")
    for mm in range(3):
        a(f"v_add_u32 v12, {64*mm}, v63")
        a("v_mul_u32_u24 v13, 43691, v12")
        a("v_lshrrev_b32 v13, 19, v13")
        a("v_mul_u32_u24 v14, 12, v13")
        a("v_sub_u32 v14, v12, v14")
        a("v_mul_u32_u24 v13, 1536, v13")
        a("v_lshlrev_b32 v14, 4, v14")
        a(f"v_add_u32 v{9+mm}, v13, v14")
        if mm:
            a(f"v_subrev_u32 v{9+mm}, {1024*mm}, v{9+mm}")
    a("s_mul_i32 s23, s20, 16*1536")
    a("s_mul_i32 s22, s34, 192")
    a("s_add_u32 s23, s23, s22")
    a("s_branch k1_w2main")
    for mat in (0,1):
        a.label("k1_w1main" if mat==0 else "k1_w2main")
        gen_wmain(a, mat)
    a.label("k1_done")
    a("s_endpgm")
    kernel_desc(a,name,128,128)

def gen_wmain(a, mat):
    NST=6; SLOT=24576; NSTAGE=12
    srdB = "s[8:11]" if mat==0 else "s[12:15]"
    stageB = 128 if mat==0 else 64*1536
    a("s_mul_i32 s24, s20, 3072")
    def issue(st):
        slot=(st%NST)*SLOT
        a(f"s_add_u32 s25, s24, {slot}")
        a("s_mov_b32 m0, s25")
        a(f"s_add_u32 s25, s25, 12288")
        for mm in range(3):
            a(f"buffer_load_dwordx4 v{6+mm}, s[8:11], s21 offen offset:{1024*mm} lds")
        a("s_mov_b32 m0, s25")
        a(f"s_add_u32 s21, s21, 128")
        for mm in range(3):
            a(f"buffer_load_dwordx4 v{9+mm}, {srdB}, s23 offen offset:{1024*mm} lds")
        a(f"s_add_u32 s23, s23, {stageB}")
    for st in range(NST-1):
        issue(st)
    a("v_and_b32 v12, 31, v63")
    a("v_lshrrev_b32 v13, 5, v63")
    a("v_lshrrev_b32 v14, 1, v12")
    a("v_and_b32 v14, 7, v14")
    a("v_xor_b32 v14, v14, v13")
    a("v_lshlrev_b32 v14, 4, v14")
    a("v_lshlrev_b32 v12, 7, v12")
    a("v_add_u32 v12, v12, v14")
    for kk in range(4):
        a(f"v_xor_b32 v{16+kk}, {32*kk}, v12")
    a("s_lshl_b32 s26, s20, 12")
    for kk in range(4):
        a(f"v_add_u32 v{20+kk}, s26, v{16+kk}")
    if mat==1:
        a("v_lshrrev_b32 v13, 4, v63")
        a("v_and_b32 v14, 15, v63")
        a("v_lshrrev_b32 v14, 2, v14")
        a("v_lshrrev_b32 v15, 1, v13")
        a("v_lshlrev_b32 v15, 3, v15")
        a("v_add_u32 v14, v14, v15")
        a("v_mul_u32_u24 v14, 192, v14")
        a("v_and_b32 v13, 1, v13")
        a("v_lshlrev_b32 v13, 5, v13")
        a("v_and_b32 v15, 3, v63")
        a("v_lshlrev_b32 v15, 3, v15")
        a("v_add3_u32 v16, v14, v13, v15")
    ACC=64
    FA=24; FB=28
    lab_skip=a.newlabel("w_skip")
    for st in range(NSTAGE):
        slot=(st%NST)*SLOT
        issued=min(st+NST-1,NSTAGE)
        a(f"s_waitcnt vmcnt({6*(issued-st-1)})")
        a("s_barrier")
        if st+NST-1<NSTAGE:
            issue(st+NST-1)
        lab=a.newlabel("w_st")
        a("s_cmp_eq_u32 s20, 3")
        a(f"s_cbranch_scc1 {lab}")
        hi = slot//65536
        def rd(kk, buf):
            fa=FA+16*buf; fb=FB+16*buf
            off=slot
            va=20+kk
            emit_dsread(a,"ds_read_b128",f"v[{fa}:{fa+3}]",va,off)
            for cb in range(3):
                if mat==0:
                    emit_dsread(a,"ds_read_b128",f"v[{fb+4*cb}:{fb+4*cb+3}]",16+kk,off+12288+cb*4096)
                else:
                    o=off+12288+kk*16*192+cb*64
                    emit_dsread(a,"ds_read_b64_tr_b16",f"v[{fb+4*cb}:{fb+4*cb+1}]",16,o)
                    emit_dsread(a,"ds_read_b64_tr_b16",f"v[{fb+4*cb+2}:{fb+4*cb+3}]",16,o+768)
        nrd = 4 if mat==0 else 7
        rd(0,0)
        for kk in range(4):
            buf=kk&1
            if kk<3:
                rd(kk+1,buf^1)
                a(f"s_waitcnt lgkmcnt({nrd})")
            else:
                a("s_waitcnt lgkmcnt(0)")
            fa=FA+16*buf; fb=FB+16*buf
            for cb in range(3):
                acc=ACC+16*cb
                c = "0" if (st==0 and kk==0) else f"v[{acc}:{acc+15}]"
                a(f"v_mfma_f32_32x32x16_bf16 v[{acc}:{acc+15}], v[{fa}:{fa+3}], v[{fb+4*cb}:{fb+4*cb+3}], {c}")
        a.label(lab)
    a("s_cmp_eq_u32 s20, 3")
    a(f"s_cbranch_scc1 {lab_skip}")
    a("s_nop 7\ns_nop 7")
    a("s_mul_i32 s21, s32, 24")
    a("s_mul_i32 s22, s34, 3")
    a("s_add_u32 s21, s21, s22")
    a("s_mul_i32 s21, s21, 48*1024")
    a("s_mul_i32 s22, s33, 3")
    a("s_add_u32 s22, s22, s20")
    a("s_lshl_b32 s22, s22, 11")
    a("s_add_u32 s21, s21, s22")
    a(f"s_add_u32 s21, s21, {W_OFF}")
    a("v_lshlrev_b32 v12, 4, v63")
    for cb in range(3):
        acc=ACC+16*cb
        for s in range(2):
            for i in range(4):
                a(f"v_cvt_pk_bf16_f32 v{24+4*s+i}, v{acc+8*s+2*i}, v{acc+8*s+2*i+1}")
        for s in range(2):
            a(f"buffer_store_dwordx4 v[{24+4*s}:{27+4*s}], v12, s[16:19], s21 offen offset:{1024*s}")
        a(f"s_add_u32 s21, s21, {48*1024}")
        a("s_nop 1")
    a.label(lab_skip)
    a("s_branch k1_done")

def emit_dsread(a, op, dst, vaddr, off, tmp=None):
    if off < 65536:
        a(f"{op} {dst}, v{vaddr} offset:{off}")
    else:
        hi = (off//65536)*65536
        a(f"v_add_u32 v60, {hi}, v{vaddr}")
        a(f"{op} {dst}, v60 offset:{off-hi}")

def gen_k2(a):
    name="k2_kernel"
    kernel_header(a,name)
    emit_exit_guard(a,128,"k2_done")
    a("s_load_dwordx2 s[36:37], s[0:1], 0")
    a("s_load_dwordx2 s[44:45], s[0:1], 56")
    a("v_and_b32 v1, 15, v0")
    a("v_lshrrev_b32 v2, 4, v0")
    a("v_lshrrev_b32 v3, 6, v0")
    a("s_nop 0")
    a("v_readfirstlane_b32 s20, v3")
    a("s_waitcnt lgkmcnt(0)")
    srd(a,8,36,X_BYTES)
    srd(a,16,44,WS_BYTES)
    gen_h_body(a, "s2")
    a.label("k2_done")
    a("s_endpgm")
    kernel_desc(a,name,128,128)

def gen_h_body(a, s_tile):
    a(f"s_mul_i32 s21, {s_tile}, 16*1536")
    a("v_mul_u32_u24 v4, 1536, v1")
    a("v_lshrrev_b32 v5, 1, v2")
    a("v_lshlrev_b32 v5, 5, v5")
    a("v_and_b32 v6, 1, v2")
    a("v_lshlrev_b32 v7, 3, v6")
    a("v_add3_u32 v4, v4, v5, v7")
    for i in range(6):
        a(f"buffer_load_dwordx2 v[{64+4*i}:{65+4*i}], v4, s[8:11], s21 offen offset:{256*i}")
        a(f"buffer_load_dwordx2 v[{66+4*i}:{67+4*i}], v4, s[8:11], s21 offen offset:{256*i+16}")
    a(f"s_lshr_b32 s22, {s_tile}, 6")
    a("s_mul_i32 s22, s22, 2304*4")
    a(f"s_add_u32 s22, s22, {MOD_OFF}")
    a("v_lshrrev_b32 v5, 1, v2")
    a("v_lshlrev_b32 v5, 6, v5")
    a("v_lshlrev_b32 v7, 4, v6")
    a("v_add_u32 v8, v5, v7")
    a("s_waitcnt vmcnt(0)")
    for i in range(24):
        a(f"v_lshlrev_b32 v{16+2*i}, 16, v{64+i}")
        a(f"v_and_b32 v{17+2*i}, 0xffff0000, v{64+i}")
    a("v_add_f32 v9, v16, v17")
    for i in range(2,48):
        a(f"v_add_f32 v9, v9, v{16+i}")
    LR=0
    def reduce(lab):
        a("v_mov_b32 v10, v9\ns_nop 1\nv_permlane16_swap_b32 v9, v10\ns_nop 1\nv_add_f32 v9, v9, v10")
        a("v_mov_b32 v10, v9\ns_nop 1\nv_permlane32_swap_b32 v9, v10\ns_nop 1\nv_add_f32 v9, v9, v10")
        a("v_lshlrev_b32 v11, 2, v1")
        a(f"s_lshl_b32 s23, s20, 6")
        a(f"s_add_u32 s23, s23, {lab}")
        a("v_add_u32 v12, s23, v11")
        a("ds_write_b32 v12, v9")
        a("s_waitcnt lgkmcnt(0)")
        a("s_barrier")
        a(f"v_add_u32 v11, {lab}, v11")
        for w in range(4):
            a(f"ds_read_b32 v{112+w}, v11 offset:{64*w}")
        a("s_waitcnt lgkmcnt(0)")
        a("v_add_f32 v112, v112, v113\nv_add_f32 v114, v114, v115\nv_add_f32 v9, v112, v114")
    reduce(0)
    a("v_mul_f32 v9, 0x3aaaaaab, v9")
    for i in range(48):
        a(f"v_sub_f32 v{16+i}, v{16+i}, v9")
    a("v_mul_f32 v9, v16, v16")
    for i in range(1,48):
        a(f"v_fmac_f32 v9, v{16+i}, v{16+i}")
    reduce(256)
    a("v_mov_b32 v10, 0x3727c5ac")
    a("v_fmac_f32 v10, 0x3aaaaaab, v9")
    a("v_rsq_f32 v10, v10")
    a("s_nop 0")
    for i in range(48):
        a(f"v_mul_f32 v{16+i}, v10, v{16+i}")
    for half in range(2):
        for ii in range(3):
            i=3*half+ii
            for piece in range(2):
                r=64+16*ii+4*piece
                a(f"buffer_load_dwordx4 v[{r}:{r+3}], v8, s[16:19], s22 offen offset:{512*i+32*piece}")
        a(f"s_add_u32 s23, s22, {768*4}")
        for ii in range(3):
            i=3*half+ii
            for piece in range(2):
                r=64+16*ii+8+4*piece
                a(f"buffer_load_dwordx4 v[{r}:{r+3}], v8, s[16:19], s23 offen offset:{512*i+32*piece}")
        a("s_waitcnt vmcnt(0)")
        for ii in range(3):
            i=3*half+ii
            for e in range(8):
                a(f"v_fma_f32 v{16+8*i+e}, v{16+8*i+e}, v{64+16*ii+8+e}, v{64+16*ii+e}")
    a(f"s_lshr_b32 s21, {s_tile}, 1")
    a("s_mul_i32 s21, s21, 48*1024")
    a(f"s_and_b32 s23, {s_tile}, 1")
    a("s_lshl_b32 s23, s23, 8")
    a("s_add_u32 s21, s21, s23")
    a(f"s_add_u32 s21, s21, {H_OFF}")
    a("v_lshrrev_b32 v5, 1, v2")
    a("v_lshlrev_b32 v5, 10, v5")
    a("v_lshlrev_b32 v7, 9, v6")
    a("v_lshlrev_b32 v9, 4, v1")
    a("v_add3_u32 v5, v5, v7, v9")
    for i in range(6):
        for e in range(4):
            a(f"v_cvt_pk_bf16_f32 v{64+4*i+e}, v{16+8*i+2*e}, v{17+8*i+2*e}")
    for i in range(6):
        a(f"buffer_store_dwordx4 v[{64+4*i}:{67+4*i}], v5, s[16:19], s21 offen")
        a(f"s_add_u32 s21, s21, 8192")

def decode_bc(a):
    a("s_and_b32 s30, s2, 7")
    a("s_lshr_b32 s31, s2, 3")
    a("s_lshr_b32 s32, s30, 2")
    a("s_lshr_b32 s33, s30, 1")
    a("s_and_b32 s33, s33, 1")
    a("s_lshl_b32 s33, s33, 2")
    a("s_lshr_b32 s35, s31, 3")
    a("s_add_u32 s33, s33, s35")
    a("s_and_b32 s34, s30, 1")
    a("s_lshl_b32 s34, s34, 3")
    a("s_and_b32 s35, s31, 7")
    a("s_add_u32 s34, s34, s35")

def prologue_common(a):
    a("s_load_dwordx2 s[44:45], s[0:1], 56")
    a("v_and_b32 v255, 63, v0")
    a("v_lshrrev_b32 v1, 6, v0")
    a("v_lshlrev_b32 v254, 4, v255")
    a("v_readfirstlane_b32 s20, v1")
    decode_bc(a)

def hbase(a, sreg):
    a(f"s_lshl_b32 s{sreg}, s32, 5")
    a("s_lshl_b32 s35, s33, 2")
    a(f"s_add_u32 s{sreg}, s{sreg}, s35")
    a(f"s_add_u32 s{sreg}, s{sreg}, s20")
    a(f"s_mul_i32 s{sreg}, s{sreg}, 48*1024")
    a(f"s_add_u32 s{sreg}, s{sreg}, {H_OFF}")

def lds_bases(a, v0, v1, v2):
    a(f"v_mov_b32 v{v0}, v254")
    a(f"v_add_u32 v{v1}, 0x10000, v254")
    a(f"v_add_u32 v{v2}, 0x20000, v254")

def dsr(a, dst, off, bases):
    b = bases[off//65536]
    a(f"ds_read_b128 {dst}, v{b} offset:{off%65536}")

def gen_k3(a):
    name="k3_kernel"
    kernel_header(a,name)
    emit_exit_guard(a,256,"k3_done")
    prologue_common(a)
    a("s_waitcnt lgkmcnt(0)")
    srd(a,16,44,WS_BYTES)
    hbase(a,21)
    a("s_mul_i32 s22, s34, 3*48*1024")
    a("s_lshl_b32 s35, s20, 10")
    a("s_add_u32 s22, s22, s35")
    a(f"s_add_u32 s22, s22, {W_OFF}")
    for blk in range(3):
        a(f"v_add_u32 v{1+blk}, {blk*(48*1024-1024)}, v254")
    a("s_mul_i32 s23, s20, 3072")
    lds_bases(a,4,5,6)
    def issue(st):
        a("s_mov_b32 m0, s23")
        a("s_add_u32 s23, s23, 12288")
        for blk in range(3):
            a(f"buffer_load_dwordx4 v{1+blk}, s[16:19], s22 offen offset:{1024*blk} lds")
        a("s_add_u32 s22, s22, 4096")
        for q in range(4):
            kb=4*st+q
            a(f"buffer_load_dwordx4 a[{4*kb}:{4*kb+3}], v254, s[16:19], s21 offen offset:{1024*q}")
        a("s_add_u32 s21, s21, 4096")
    NPRE=8
    for st in range(NPRE): issue(st)
    ACC=16; FB=64
    for role in ("t","u"):
        if role=="t":
            a("s_cmp_lt_u32 s34, 8")
            a("s_cbranch_scc0 k3_urole")
        else:
            a.label("k3_urole")
        def rd(kb):
            buf=kb&1
            for blk in range(3):
                off=((kb>>2)*12+(kb&3)*3+blk)*1024
                r=FB+12*buf+4*blk
                dsr(a,f"v[{r}:{r+3}]",off,(4,5,6))
        issued=NPRE
        for kb in range(48):
            st=kb>>2
            if kb==0:
                a(f"s_waitcnt vmcnt({7*(issued-1)})")
                a("s_barrier")
                rd(0)
            if kb+1<48:
                if (kb+1)%4==0:
                    nst=(kb+1)>>2
                    a(f"s_waitcnt vmcnt({7*(issued-nst-1)})")
                    a("s_barrier")
                    if issued<12:
                        issue(issued); issued+=1
                rd(kb+1)
                a("s_waitcnt lgkmcnt(3)")
            else:
                a("s_waitcnt lgkmcnt(0)")
            buf=kb&1
            for blk in range(3):
                acc=ACC+16*blk
                r=FB+12*buf+4*blk
                c="0" if kb==0 else f"v[{acc}:{acc+15}]"
                if role=="t":
                    a(f"v_mfma_f32_32x32x16_bf16 v[{acc}:{acc+15}], v[{r}:{r+3}], a[{4*kb}:{4*kb+3}], {c}")
                else:
                    a(f"v_mfma_f32_32x32x16_bf16 v[{acc}:{acc+15}], a[{4*kb}:{4*kb+3}], v[{r}:{r+3}], {c}")
        a("s_nop 7\ns_nop 7")
        if role=="t":
            a("s_lshl_b32 s21, s32, 5\ns_lshl_b32 s35, s33, 2\ns_add_u32 s21, s21, s35\ns_add_u32 s21, s21, s20")
            a("s_mul_i32 s21, s21, 48*1024")
            a("s_mul_i32 s35, s34, 6*1024")
            a("s_add_u32 s21, s21, s35")
            a(f"s_add_u32 s21, s21, {T_OFF}")
            import math, struct
            sc=struct.unpack("<I",struct.pack("<f", math.log2(math.e)/math.sqrt(D)))[0]
            a(f"s_mov_b32 s24, {hex(sc)}")
            for blk in range(3):
                acc=ACC+16*blk
                for i in range(16):
                    a(f"v_mul_f32 v{acc+i}, s24, v{acc+i}")
                for s in range(2):
                    for i in range(4):
                        a(f"v_cvt_pk_bf16_f32 v{FB+8*(blk&1)+4*s+i}, v{acc+8*s+2*i}, v{acc+8*s+2*i+1}")
                for s in range(2):
                    r=FB+8*(blk&1)+4*s
                    a(f"buffer_store_dwordx4 v[{r}:{r+3}], v254, s[16:19], s21 offen offset:{1024*s}")
                a("s_add_u32 s21, s21, 2048")
            a("s_branch k3_done")
        else:
            a("s_mul_i32 s21, s32, 48*32*1024")
            a("s_sub_u32 s35, s34, 8")
            a("s_mul_i32 s35, s35, 6*32*1024")
            a("s_add_u32 s21, s21, s35")
            a("s_lshl_b32 s35, s33, 2\ns_add_u32 s35, s35, s20\ns_lshl_b32 s35, s35, 10")
            a("s_add_u32 s21, s21, s35")
            a(f"s_add_u32 s21, s21, {UT_OFF}")
            frag16_voff(a, 7)
            for blk in range(3):
                acc=ACC+16*blk
                for s in range(2):
                    for i in range(4):
                        a(f"v_cvt_pk_bf16_f32 v{FB+8*(blk&1)+4*s+i}, v{acc+8*s+2*i}, v{acc+8*s+2*i+1}")
                for s in range(2):
                    r=FB+8*(blk&1)+4*s
                    a(f"buffer_store_dwordx4 v[{r}:{r+3}], v7, s[16:19], s21 offen offset:{256*s}")
                a(f"s_add_u32 s21, s21, {2*32*1024}")
    a.label("k3_done")
    a("s_endpgm")
    kernel_desc(a,name,512,256)

def frag16_voff(a, vreg):
    a(f"v_and_b32 v8, 15, v255")
    a(f"v_lshlrev_b32 v8, 4, v8")
    a(f"v_lshrrev_b32 v9, 4, v255")
    a(f"v_and_b32 v9, 1, v9")
    a(f"v_lshlrev_b32 v9, 15, v9")
    a(f"v_lshrrev_b32 v10, 5, v255")
    a(f"v_lshlrev_b32 v10, 9, v10")
    a(f"v_add3_u32 v{vreg}, v8, v9, v10")

def gen_k4(a):
    name="k4_kernel"
    kernel_header(a,name)
    emit_exit_guard(a,256,"k4_done")
    prologue_common(a)
    a("s_waitcnt lgkmcnt(0)")
    srd(a,16,44,WS_BYTES)
    hbase(a,21)
    a("s_lshl_b32 s22, s32, 5\ns_lshl_b32 s35, s34, 1\ns_add_u32 s22, s22, s35")
    a("s_mul_i32 s22, s22, 48*1024")
    a("s_lshl_b32 s35, s20, 10")
    a("s_add_u32 s22, s22, s35")
    a(f"s_add_u32 s22, s22, {T_OFF}")
    for q in range(2):
        a(f"v_add_u32 v{1+q}, {q*(48*1024-1024)}, v254")
    a("s_lshl_b32 s23, s20, 11")
    lds_bases(a,4,5,6)
    def issue(st):
        a("s_mov_b32 m0, s23")
        a("s_add_u32 s23, s23, 8192")
        for q in range(2):
            a(f"buffer_load_dwordx4 v{1+q}, s[16:19], s22 offen offset:{1024*q} lds")
        a("s_add_u32 s22, s22, 4096")
        for q in range(4):
            kb=4*st+q
            a(f"buffer_load_dwordx4 a[{4*kb}:{4*kb+3}], v254, s[16:19], s21 offen offset:{1024*q}")
        a("s_add_u32 s21, s21, 4096")
    NPRE=10
    for st in range(NPRE): issue(st)
    ACC=16; FB=64
    def rd(kb):
        buf=kb&1
        for q in range(2):
            off=(kb*2+q)*1024
            r=FB+8*buf+4*q
            dsr(a,f"v[{r}:{r+3}]",off,(4,5,6))
    issued=NPRE
    for kb in range(48):
        if kb==0:
            a(f"s_waitcnt vmcnt({6*(issued-1)})")
            a("s_barrier")
            rd(0)
        if kb+1<48:
            if (kb+1)%4==0:
                nst=(kb+1)>>2
                a(f"s_waitcnt vmcnt({6*(issued-nst-1)})")
                a("s_barrier")
                if issued<12:
                    issue(issued); issued+=1
            rd(kb+1)
            a("s_waitcnt lgkmcnt(2)")
        else:
            a("s_waitcnt lgkmcnt(0)")
        buf=kb&1
        for q in range(2):
            acc=ACC+16*q
            r=FB+8*buf+4*q
            c="0" if kb==0 else f"v[{acc}:{acc+15}]"
            a(f"v_mfma_f32_32x32x16_bf16 v[{acc}:{acc+15}], a[{4*kb}:{4*kb+3}], v[{r}:{r+3}], {c}")
    a("s_nop 7\ns_nop 7")
    a("s_lshl_b32 s21, s32, 6\ns_lshl_b32 s35, s34, 2\ns_add_u32 s21, s21, s35")
    a("s_lshl_b32 s21, s21, 15")
    a("s_lshl_b32 s35, s33, 2\ns_add_u32 s35, s35, s20\ns_lshl_b32 s35, s35, 10")
    a("s_add_u32 s21, s21, s35")
    a(f"s_add_u32 s21, s21, {P_OFF}")
    frag16_voff(a, 7)
    for q in range(2):
        acc=ACC+16*q
        for i in range(16):
            a(f"v_exp_f32 v{acc+i}, v{acc+i}")
        a("s_nop 0")
        for s in range(2):
            for i in range(4):
                a(f"v_cvt_pk_bf16_f32 v{FB+8*q+4*s+i}, v{acc+8*s+2*i}, v{acc+8*s+2*i+1}")
        for s in range(2):
            r=FB+8*q+4*s
            a(f"buffer_store_dwordx4 v[{r}:{r+3}], v7, s[16:19], s21 offen offset:{256*s}")
        a(f"s_add_u32 s21, s21, {2*32*1024}")
    a.label("k4_done")
    a("s_endpgm")
    kernel_desc(a,name,512,256)

def gen_k5(a):
    name="k5_kernel"
    kernel_header(a,name)
    emit_exit_guard(a,256,"k5_done")
    a("s_load_dwordx2 s[36:37], s[0:1], 0")
    a("s_load_dwordx2 s[38:39], s[0:1], 40")
    prologue_common(a)
    a("s_waitcnt lgkmcnt(0)")
    srd(a,16,44,WS_BYTES)
    srd(a,8,36,X_BYTES)
    srd(a,12,38,OUT_BYTES)
    a("s_lshr_b32 s33, s30, 1\ns_and_b32 s33, s33, 1\ns_lshl_b32 s33, s33, 3\ns_and_b32 s35, s31, 7\ns_add_u32 s33, s33, s35")
    a("s_and_b32 s34, s30, 1\ns_lshl_b32 s34, s34, 2\ns_lshr_b32 s35, s31, 3\ns_add_u32 s34, s34, s35")
    a("s_lshr_b32 s40, s20, 1")
    a("s_and_b32 s41, s20, 1")
    a("s_lshl_b32 s22, s32, 6\ns_lshl_b32 s35, s33, 2\ns_add_u32 s22, s22, s35")
    a("s_lshl_b32 s22, s22, 15")
    a("s_lshl_b32 s35, s40, 4\ns_add_u32 s35, s35, s41")
    a("s_lshl_b32 s23, s35, 12")
    a("s_lshl_b32 s35, s35, 10")
    a("s_add_u32 s22, s22, s35")
    a(f"s_add_u32 s22, s22, {P_OFF}")
    for q in range(4):
        a(f"v_add_u32 v{1+q}, {q*(32*1024-1024)}, v254")
    a("s_mul_i32 s21, s32, 48\ns_mul_i32 s35, s34, 6\ns_add_u32 s21, s21, s35\ns_mul_i32 s35, s41, 3\ns_add_u32 s21, s21, s35")
    a("s_lshl_b32 s21, s21, 15")
    a("s_lshl_b32 s35, s40, 14")
    a("s_add_u32 s21, s21, s35")
    a(f"s_add_u32 s21, s21, {UT_OFF}")
    for aa in range(3):
        a(f"v_add_u32 v{5+aa}, {aa*32*1024}, v254")
    a("s_lshl_b32 s35, s40, 16")
    a("v_add_u32 v8, s35, v254")
    def issue(st):
        a("s_mov_b32 m0, s23")
        a("s_add_u32 s23, s23, 8192")
        for q in range(4):
            a(f"buffer_load_dwordx4 v{1+q}, s[16:19], s22 offen offset:{1024*q} lds")
        a("s_add_u32 s22, s22, 2048")
        for ss in range(2):
            s=2*st+ss
            for aa in range(3):
                r=(s*3+aa)*4
                a(f"buffer_load_dwordx4 a[{r}:{r+3}], v{5+aa}, s[16:19], s21 offen offset:{1024*ss}")
        a("s_add_u32 s21, s21, 2048")
    NPRE=6
    for st in range(NPRE): issue(st)
    for i in range(4):
        a(f"v_mov_b32 v{12+i}, 0x3f803f80")
    ACC=16
    LACC=64; FB=72
    def rd(s):
        buf=s&1
        for q in range(4):
            r=FB+16*buf+4*q
            a(f"ds_read_b128 v[{r}:{r+3}], v8 offset:{s*4096+q*1024}")
    issued=NPRE
    for nh in range(2):
        if nh==0:
            a("s_cmp_eq_u32 s41, 0")
            a("s_cbranch_scc0 k5_nh1")
        else:
            a.label("k5_nh1")
        issued=NPRE
        for s in range(16):
            if s==0:
                a(f"s_waitcnt vmcnt({10*(issued-1)})")
                a("s_barrier")
                rd(0)
            if s+1<16:
                if (s+1)%2==0:
                    nst=(s+1)>>1
                    a(f"s_waitcnt vmcnt({10*(issued-nst-1)})")
                    a("s_barrier")
                    if issued<8:
                        issue(issued); issued+=1
                rd(s+1)
                a("s_waitcnt lgkmcnt(4)")
            else:
                a("s_waitcnt lgkmcnt(0)")
            buf=s&1
            for q in range(4):
                r=FB+16*buf+4*q
                for aa in range(3):
                    acc=ACC+12*q+4*aa
                    u=(s*3+aa)*4
                    c="0" if s==0 else f"v[{acc}:{acc+3}]"
                    a(f"v_mfma_f32_16x16x32_bf16 v[{acc}:{acc+3}], a[{u}:{u+3}], v[{r}:{r+3}], {c}")
                if (q>>1)==nh:
                    acc=LACC+4*(q&1)
                    c="0" if s==0 else f"v[{acc}:{acc+3}]"
                    a(f"v_mfma_f32_16x16x32_bf16 v[{acc}:{acc+3}], v[12:15], v[{r}:{r+3}], {c}")
        if nh==0: a("s_branch k5_epi")
    a.label("k5_epi")
    a("s_nop 7\ns_nop 1")
    a("s_barrier")
    a("s_mul_i32 s21, s20, 6144")
    a("v_add_u32 v9, s21, v254")
    a("s_cmp_eq_u32 s40, 0")
    a("s_cbranch_scc0 k5_send1")
    for i in range(6):
        r=ACC+24+4*i
        a(f"ds_write_b128 v9, v[{r}:{r+3}] offset:{1024*i}")
    a("s_branch k5_sent")
    a.label("k5_send1")
    for i in range(6):
        r=ACC+4*i
        a(f"ds_write_b128 v9, v[{r}:{r+3}] offset:{1024*i}")
    a("s_waitcnt lgkmcnt(0)")
    for i in range(24):
        a(f"v_mov_b32 v{ACC+i}, v{ACC+24+i}")
    a.label("k5_sent")
    a("v_and_b32 v10, 15, v255")
    a("v_lshlrev_b32 v10, 2, v10")
    a("s_lshl_b32 s21, s40, 8\ns_lshl_b32 s35, s41, 7\ns_add_u32 s21, s21, s35\ns_add_u32 s21, s21, 32768")
    a("v_add_u32 v11, s21, v10")
    a("ds_write_b32 v11, v64")
    a("ds_write_b32 v11, v68 offset:64")
    a("s_waitcnt lgkmcnt(0)")
    a("s_barrier")
    a("s_xor_b32 s21, s20, 2\ns_mul_i32 s21, s21, 6144")
    a("v_add_u32 v9, s21, v254")
    for i in range(6):
        r=40+4*i
        a(f"ds_read_b128 v[{r}:{r+3}], v9 offset:{1024*i}")
    a("s_lshl_b32 s21, s40, 7\ns_add_u32 s21, s21, 32768")
    a("v_add_u32 v11, s21, v10")
    a("ds_read_b32 v64, v11\nds_read_b32 v65, v11 offset:64\nds_read_b32 v66, v11 offset:256\nds_read_b32 v67, v11 offset:320")
    a("s_lshl_b32 s21, s32, 10\ns_lshl_b32 s35, s33, 6\ns_add_u32 s21, s21, s35\ns_lshl_b32 s35, s40, 5\ns_add_u32 s21, s21, s35")
    a("s_mul_i32 s21, s21, 1536")
    a("s_mul_i32 s35, s34, 192\ns_add_u32 s21, s21, s35\ns_mul_i32 s35, s41, 96\ns_add_u32 s21, s21, s35")
    a("v_and_b32 v72, 15, v255")
    a("v_mul_u32_u24 v72, 1536, v72")
    a("v_lshrrev_b32 v73, 4, v255")
    a("v_lshlrev_b32 v74, 3, v73")
    a("v_add_u32 v72, v72, v74")
    a(f"v_add_u32 v75, {16*1536}, v72")
    for qq in range(2):
        for nb in range(3):
            r=76+6*qq+2*nb
            a(f"buffer_load_dwordx2 v[{r}:{r+1}], v{72 if qq==0 else 75}, s[8:11], s21 offen offset:{32*nb}")
    a("s_mul_i32 s22, s32, 2304*4\ns_mul_i32 s35, s34, 96*4\ns_add_u32 s22, s22, s35\ns_mul_i32 s35, s41, 48*4\ns_add_u32 s22, s22, s35")
    a(f"s_add_u32 s22, s22, {MOD_OFF+1536*4}")
    a("v_lshlrev_b32 v74, 4, v73")
    for nb in range(3):
        r=88+4*nb
        a(f"buffer_load_dwordx4 v[{r}:{r+3}], v74, s[16:19], s22 offen offset:{64*nb}")
    a("s_waitcnt lgkmcnt(0)")
    for i in range(24):
        a(f"v_add_f32 v{16+i}, v{16+i}, v{40+i}")
    a("v_add_f32 v64, v64, v66\nv_add_f32 v65, v65, v67")
    a("v_rcp_f32 v64, v64\nv_rcp_f32 v65, v65")
    a("s_nop 0")
    a("s_waitcnt vmcnt(0)")
    for qq in range(2):
        for nb in range(3):
            for r in range(4):
                acc=16+12*qq+4*nb+r
                a(f"v_mul_f32 v{acc}, v{acc}, v{64+qq}")
            xr=76+6*qq+2*nb
            a(f"v_lshlrev_b32 v100, 16, v{xr}\nv_and_b32 v101, 0xffff0000, v{xr}\nv_lshlrev_b32 v102, 16, v{xr+1}\nv_and_b32 v103, 0xffff0000, v{xr+1}")
            for r in range(4):
                acc=16+12*qq+4*nb+r
                a(f"v_fma_f32 v{acc}, v{acc}, v{88+4*nb+r}, v{100+r}")
            acc=16+12*qq+4*nb
            a(f"v_cvt_pk_bf16_f32 v{xr}, v{acc}, v{acc+1}\nv_cvt_pk_bf16_f32 v{xr+1}, v{acc+2}, v{acc+3}")
            a(f"buffer_store_dwordx2 v[{xr}:{xr+1}], v{72 if qq==0 else 75}, s[12:15], s21 offen offset:{32*nb}")
    a.label("k5_done")
    a("s_endpgm")
    kernel_desc(a,name,512,256)

HEADER = open("standalone__dit_adaln_block__diffusion.s.ref").read().split("; Override")[0]

def build():
    a=Asm()
    launches=[("k1_kernel",256,147456),("k2_kernel",128,1024),("k3_kernel",256,147456),("k4_kernel",256,98304),("k5_kernel",256,131072)]
    hdr=HEADER
    for n,g,l in launches:
        hdr+=f"; @launch kernel={n} grid=({g},1,1) block=(256,1,1) lds={l}\n"
    hdr+='.amdgcn_target "amdgcn-amd-amdhsa--gfx950"\n'
    gen_k1(a); gen_k2(a); gen_k3(a); gen_k4(a); gen_k5(a)
    return hdr+a.text()

if __name__=="__main__":
    import sys
    out=sys.argv[1] if len(sys.argv)>1 else "standalone__dit_adaln_block__diffusion.s"
    open(out,"w").write(build())
    print("written",out)
```

```python
B, N, D = 2, 1024, 768
X_BYTES = B*N*D*2
C_BYTES = B*D*2
WQKV_BYTES = D*3*D*2
WO_BYTES = D*D*2
WMOD_BYTES = D*6*D*2
OUT_BYTES = X_BYTES
WS_BYTES = 268435456

MOD_OFF = 0x0
H_OFF   = 0x100000
W_OFF   = 0x400000
T_OFF   = 0x700000
UT_OFF  = 0xA00000
P_OFF   = 0xD00000
MR_OFF  = 0x1100000
FLAG_OFF= 0x1200000

KARG = dict(x=0, c=8, wqkv=16, wo=24, wmod=32, out=40, dbg=48, ws=56)

class Asm:
    def __init__(self):
        self.L = []
        self.uid = 0
    def __call__(self, s=""):
        for ln in s.strip("\n").split("\n"):
            self.L.append("    " + ln.strip() if ln.strip() and not ln.strip().endswith(":") else ln.strip())
    def c(self, s):
        self.L.append("    ; " + s)
    def label(self, s):
        self.L.append(s + ":")
    def newlabel(self, p="L"):
        self.uid += 1
        return f"{p}_{self.uid}"
    def text(self):
        return "\n".join(self.L) + "\n"

def srd(a, sreg, ptr_lo, nbytes):
    a(f"s_mov_b32 s{sreg}, s{ptr_lo}")
    a(f"s_mov_b32 s{sreg+1}, s{ptr_lo+1}")
    a(f"s_mov_b32 s{sreg+2}, {hex(nbytes)}")
    a(f"s_mov_b32 s{sreg+3}, 0x20000")

def kernel_header(a, name):
    a.L.append(".text")
    a.L.append(f".globl {name}")
    a.L.append(".p2align 8")
    a.L.append(f".type {name},@function")
    a.L.append(f"{name}:")

def kernel_desc(a, name, vgpr, accum, sgpr=102):
    a.L.append('.section .rodata,"a"')
    a.L.append(".p2align 6")
    a.L.append(f".amdhsa_kernel {name}")
    a.L.append(f"  .amdhsa_next_free_vgpr {vgpr}")
    a.L.append(f"  .amdhsa_next_free_sgpr {sgpr}")
    a.L.append(f"  .amdhsa_accum_offset {accum}")
    a.L.append("  .amdhsa_group_segment_fixed_size 0")
    a.L.append("  .amdhsa_kernarg_size 64")
    a.L.append("  .amdhsa_user_sgpr_count 2")
    a.L.append("  .amdhsa_user_sgpr_kernarg_segment_ptr 1")
    a.L.append("  .amdhsa_system_sgpr_workgroup_id_x 1")
    a.L.append("  .amdhsa_float_denorm_mode_32 3")
    a.L.append(".end_amdhsa_kernel")

def vr(base, n=4):
    return f"v[{base}:{base+n-1}]"
def ar(base, n=4):
    return f"a[{base}:{base+n-1}]"

STAMP_OFF = 0x1300000
PROFILE = False
NSTAMP = 10
def stamp(a, idx):
    if PROFILE_ON[0]:
        a(f"s_memrealtime s[{80+2*idx}:{81+2*idx}]")
PROFILE_ON=[False]
def stamp_init(a):
    if PROFILE_ON[0]:
        for i in range(NSTAMP):
            a(f"s_mov_b32 s{80+2*i}, 0")
def stamp_flush(a, kidx, vtmp=(1,2), srd_reg=16, wgreg="s2", lanev="v0"):
    if not PROFILE_ON[0]: return
    lab=a.newlabel("stamp_skip")
    a("s_waitcnt lgkmcnt(0)")
    a(f"v_cmp_eq_u32 vcc, 0, {lanev}")
    a("s_and_saveexec_b64 s[78:79], vcc")
    a(f"s_cbranch_execz {lab}")
    a(f"s_lshl_b32 s77, {wgreg}, 6")
    a(f"s_add_u32 s77, s77, {STAMP_OFF + kidx*256*64}")
    a(f"v_mov_b32 v{vtmp[0]}, 0")
    for i in range(NSTAMP):
        a(f"v_mov_b32 v{vtmp[1]}, s{80+2*i}")
        a(f"buffer_store_dword v{vtmp[1]}, v{vtmp[0]}, s[{srd_reg}:{srd_reg+3}], s77 offen offset:{4*i}")
        a("s_nop 1")
    a.label(lab)
    a("s_mov_b64 exec, s[78:79]")
```

```python
from common import *

def emit_exit_guard(a, nwg, lab):
    a(f"s_cmp_ge_u32 s2, {nwg}")
    a(f"s_cbranch_scc1 {lab}")

def gen_mtask(a, tag, s_tau):
    LW, LS, LR = 0, 24576, 27648+512
    a.c("---- mod task ----")
    a(f"s_lshl_b32 s21, s{s_tau}, 5")
    a("v_lshrrev_b32 v1, 1, v63")
    a("v_mul_u32_u24 v1, 9216, v1")
    a("v_and_b32 v2, 1, v63")
    a("v_lshlrev_b32 v2, 4, v2")
    a("v_add_u32 v1, v1, v2")
    a("s_mul_i32 s22, s20, 192*9216")
    a("s_add_u32 s22, s22, s21")
    a("s_mul_i32 s23, s20, 192*32")
    a("v_and_b32 v3, 127, v0")
    a("v_mul_u32_u24 v3, 12, v3")
    a("v_lshrrev_b32 v4, 7, v0")
    a("v_mul_u32_u24 v4, 1536, v4")
    a("v_add_u32 v3, v3, v4")
    a("buffer_load_dwordx3 v[8:10], v3, s[12:15], 0 offen")
    for m in range(6):
        a(f"s_mov_b32 m0, s23")
        a(f"s_add_u32 s23, s23, 1024")
        a(f"buffer_load_dwordx4 v1, s[8:11], s22 offen lds")
        a(f"s_add_u32 s22, s22, {32*9216}")
    a("s_waitcnt vmcnt(6)")
    stamp(a,1)
    for i in range(3):
        a(f"v_lshlrev_b32 v{12+2*i}, 16, v{8+i}")
        a(f"v_and_b32 v{13+2*i}, 0xffff0000, v{8+i}")
    a("s_mov_b32 s24, 0xbfb8aa3b")
    for i in range(6):
        a(f"v_mul_f32 v{20+i}, s24, v{12+i}")
    for i in range(6):
        a(f"v_exp_f32 v{20+i}, v{20+i}")
    a("s_nop 0")
    for i in range(6):
        a(f"v_add_f32 v{20+i}, 1.0, v{20+i}")
    for i in range(6):
        a(f"v_rcp_f32 v{20+i}, v{20+i}")
    a("s_nop 0")
    for i in range(6):
        a(f"v_mul_f32 v{20+i}, v{20+i}, v{12+i}")
    for i in range(3):
        a(f"v_cvt_pk_bf16_f32 v{8+i}, v{20+2*i}, v{21+2*i}")
    a(f"v_add_u32 v3, {LS}, v3")
    for i in range(3):
        a(f"ds_write_b32 v3, v{8+i} offset:{4*i}")
    a("v_lshrrev_b32 v4, 4, v63")
    a("v_and_b32 v5, 1, v63")
    a("v_mul_u32_u24 v5, 1536, v5")
    a("v_lshlrev_b32 v6, 4, v4")
    a("v_add_u32 v5, v5, v6")
    a("s_mul_i32 s24, s20, 192*2")
    a(f"s_add_u32 s24, s24, {LS}")
    a("v_add_u32 v5, s24, v5")
    a("v_and_b32 v6, 15, v63")
    a("v_lshrrev_b32 v6, 2, v6")
    a("v_lshlrev_b32 v7, 3, v4")
    a("v_add_u32 v6, v6, v7")
    a("v_lshlrev_b32 v6, 5, v6")
    a("v_and_b32 v7, 3, v63")
    a("v_lshlrev_b32 v7, 3, v7")
    a("v_add_u32 v6, v6, v7")
    a("s_mul_i32 s24, s20, 192*32")
    a(f"v_add_u32 v6, s24, v6")
    a("s_waitcnt vmcnt(0) lgkmcnt(0)")
    stamp(a,2)
    a("s_barrier")
    for s in range(6):
        a(f"ds_read_b128 v[{12+4*(s%2)*2}:{15+4*(s%2)*2}], v5 offset:{64*s}")
        a(f"ds_read_b64_tr_b16 v[{16+8*(s%2)}:{17+8*(s%2)}], v6 offset:{1024*s}")
        a(f"ds_read_b64_tr_b16 v[{18+8*(s%2)}:{19+8*(s%2)}], v6 offset:{1024*s+128}")
        a("s_waitcnt lgkmcnt(0)")
        base=12+8*(s%2)
        c = "0" if s==0 else "v[32:35]"
        a(f"v_mfma_f32_16x16x32_bf16 v[32:35], v[{base}:{base+3}], v[{base+4}:{base+7}], {c}")
    a("s_nop 7")
    a("s_nop 1")
    a("v_and_b32 v6, 15, v63")
    a("v_lshlrev_b32 v6, 3, v6")
    a("s_lshl_b32 s24, s20, 7")
    a(f"s_add_u32 s24, s24, {LR}")
    a("v_add_u32 v6, s24, v6")
    a("s_mov_b64 s[26:27], exec")
    a("s_mov_b64 exec, 0xffff")
    a("ds_write_b64 v6, v[32:33]")
    a("s_mov_b64 exec, s[26:27]")
    a("s_waitcnt lgkmcnt(0)")
    a("s_barrier")
    lab = a.newlabel("mt_skip")
    a("s_cmp_eq_u32 s20, 0")
    a(f"s_cbranch_scc0 {lab}")
    a("v_and_b32 v6, 15, v63")
    a("v_lshrrev_b32 v7, 4, v63")
    a("v_and_b32 v7, 1, v7")
    a("v_lshlrev_b32 v8, 3, v6")
    a("v_lshlrev_b32 v9, 2, v7")
    a("v_add_u32 v8, v8, v9")
    a(f"v_add_u32 v8, {LR}, v8")
    for w in range(4):
        a(f"ds_read_b32 v{12+w}, v8 offset:{128*w}")
    a("s_waitcnt lgkmcnt(0)")
    a("v_add_f32 v12, v12, v13")
    a("v_add_f32 v14, v14, v15")
    a("v_add_f32 v12, v12, v14")
    a(f"s_sub_u32 s24, s{s_tau}, 48")
    a("s_cmp_lt_u32 s24, 48")
    a("s_cselect_b32 s24, 1.0, 0")
    a("v_add_f32 v12, s24, v12")
    a("v_mul_u32_u24 v7, 2304*4, v7")
    a("v_lshlrev_b32 v6, 2, v6")
    a("v_add_u32 v7, v7, v6")
    a(f"s_lshl_b32 s24, s{s_tau}, 6")
    a(f"s_add_u32 s24, s24, {MOD_OFF}")
    a("s_mov_b32 exec_lo, -1\ns_mov_b32 exec_hi, 0")
    a("buffer_store_dword v12, v7, s[16:19], s24 offen")
    a("s_mov_b64 exec, s[26:27]")
    a.label(lab)
    a("s_barrier")

def gen_k1(a):
    name="k1_kernel"
    kernel_header(a,name)
    emit_exit_guard(a,256,"k1_exit")
    stamp_init(a); stamp(a,0)
    a("s_load_dwordx4 s[36:39], s[0:1], 8")
    a("s_load_dwordx4 s[40:43], s[0:1], 24")
    a("s_load_dwordx2 s[44:45], s[0:1], 56")
    a("v_and_b32 v63, 63, v0")
    a("v_lshrrev_b32 v1, 6, v0")
    a("s_and_b32 s30, s2, 7")
    a("v_readfirstlane_b32 s20, v1")
    a("s_lshr_b32 s31, s2, 3")
    a("s_waitcnt lgkmcnt(0)")
    srd(a,16,44,WS_BYTES)
    a("s_cmp_lt_u32 s31, 16")
    a("s_cbranch_scc1 k1_wrole")
    srd(a,8,42,WMOD_BYTES)
    srd(a,12,36,C_BYTES)
    a("s_sub_u32 s32, s31, 16")
    a("s_cmp_lt_u32 s32, 12")
    a("s_cbranch_scc0 k1_gate")
    a("s_lshr_b32 s33, s32, 2")
    a("s_lshl_b32 s33, s33, 3")
    a("s_add_u32 s33, s33, s30")
    a("s_lshl_b32 s33, s33, 2")
    a("s_and_b32 s34, s32, 3")
    a("s_add_u32 s33, s33, s34")
    a("s_mov_b32 s35, 1")
    a("s_branch k1_mloop")
    a.label("k1_gate")
    a("s_add_u32 s33, s30, 24")
    a("s_lshl_b32 s33, s33, 2")
    a("s_sub_u32 s34, s32, 12")
    a("s_add_u32 s33, s33, s34")
    a("s_cmp_lt_u32 s30, 4")
    a("s_cselect_b32 s35, 2, 1")
    a.label("k1_mloop")
    gen_mtask(a,"m",33)
    a("s_add_u32 s33, s33, 32")
    a("s_sub_u32 s35, s35, 1")
    a("s_cmp_lg_u32 s35, 0")
    a("s_cbranch_scc1 k1_mloop")
    a("s_branch k1_done")
    a.label("k1_wrole")
    a("s_lshr_b32 s32, s30, 2")
    a("s_lshr_b32 s33, s30, 1")
    a("s_and_b32 s33, s33, 1")
    a("s_lshl_b32 s33, s33, 2")
    a("s_lshr_b32 s34, s31, 2")
    a("s_add_u32 s33, s33, s34")
    a("s_and_b32 s34, s30, 1")
    a("s_lshl_b32 s34, s34, 2")
    a("s_and_b32 s35, s31, 3")
    a("s_add_u32 s34, s34, s35")
    srd(a,8,38,WQKV_BYTES)
    srd(a,12,40,WO_BYTES)
    a("v_lshrrev_b32 v1, 3, v63")
    a("v_and_b32 v2, 7, v63")
    a("v_lshrrev_b32 v3, 1, v1")
    a("v_xor_b32 v2, v2, v3")
    a("v_mul_u32_u24 v1, 4608, v1")
    a("v_lshlrev_b32 v3, 4, v2")
    a("v_add_u32 v4, v1, v3")
    a("v_xor_b32 v3, 64, v3")
    a("v_add_u32 v5, v1, v3")
    a("s_mul_i32 s21, s33, 96*4608")
    a("s_mul_i32 s22, s20, 24*4608")
    a("s_add_u32 s21, s21, s22")
    a("s_mul_i32 s22, s32, 3072")
    a("s_add_u32 s21, s21, s22")
    a("s_and_b32 s22, s20, 1")
    a("s_cmp_eq_u32 s22, 0")
    a("s_cselect_b64 vcc, -1, 0")
    a("v_cndmask_b32 v6, v5, v4, vcc")
    a("v_cndmask_b32 v7, v4, v5, vcc")
    a("v_mov_b32 v8, v6")
    a(f"v_add_u32 v7, {8*4608 - 1024}, v7")
    a(f"v_add_u32 v8, {16*4608 - 2048}, v8")
    a("s_cmp_eq_u32 s32, 0")
    a("s_cbranch_scc0 k1_w2setup")
    a("s_mul_i32 s23, s34, 96*4608")
    a("s_mul_i32 s22, s20, 24*4608")
    a("s_add_u32 s23, s23, s22")
    a("s_add_u32 s23, s23, 1536")
    a("v_mov_b32 v9, v6\nv_mov_b32 v10, v7\nv_mov_b32 v11, v8")
    a("s_branch k1_w1main")
    a.label("k1_w2setup")
    for mm in range(3):
        a(f"v_add_u32 v12, {64*mm}, v63")
        a("v_mul_u32_u24 v13, 43691, v12")
        a("v_lshrrev_b32 v13, 19, v13")
        a("v_mul_u32_u24 v14, 12, v13")
        a("v_sub_u32 v14, v12, v14")
        a("v_mul_u32_u24 v13, 1536, v13")
        a("v_lshlrev_b32 v14, 4, v14")
        a(f"v_add_u32 v{9+mm}, v13, v14")
        if mm:
            a(f"v_subrev_u32 v{9+mm}, {1024*mm}, v{9+mm}")
    a("s_mul_i32 s23, s20, 16*1536")
    a("s_mul_i32 s22, s34, 192")
    a("s_add_u32 s23, s23, s22")
    a("s_branch k1_w2main")
    for mat in (0,1):
        a.label("k1_w1main" if mat==0 else "k1_w2main")
        gen_wmain(a, mat)
    a.label("k1_done")
    stamp(a,9)
    stamp_flush(a,0)
    a.label("k1_exit")
    a("s_endpgm")
    kernel_desc(a,name,128,128)

def gen_wmain(a, mat):
    NST=6; SLOT=24576; NSTAGE=12
    srdB = "s[8:11]" if mat==0 else "s[12:15]"
    stageB = 128 if mat==0 else 64*1536
    a("s_mul_i32 s24, s20, 3072")
    def issue(st):
        slot=(st%NST)*SLOT
        a(f"s_add_u32 s25, s24, {slot}")
        a("s_mov_b32 m0, s25")
        a(f"s_add_u32 s25, s25, 12288")
        for mm in range(3):
            a(f"buffer_load_dwordx4 v{6+mm}, s[8:11], s21 offen offset:{1024*mm} lds")
        a("s_mov_b32 m0, s25")
        a(f"s_add_u32 s21, s21, 128")
        for mm in range(3):
            a(f"buffer_load_dwordx4 v{9+mm}, {srdB}, s23 offen offset:{1024*mm} lds")
        a(f"s_add_u32 s23, s23, {stageB}")
    for st in range(NST-1):
        issue(st)
    a("v_and_b32 v12, 31, v63")
    a("v_lshrrev_b32 v13, 5, v63")
    a("v_lshrrev_b32 v14, 1, v12")
    a("v_and_b32 v14, 7, v14")
    a("v_xor_b32 v14, v14, v13")
    a("v_lshlrev_b32 v14, 4, v14")
    a("v_lshlrev_b32 v12, 7, v12")
    a("v_add_u32 v12, v12, v14")
    for kk in range(4):
        a(f"v_xor_b32 v{16+kk}, {32*kk}, v12")
    a("s_lshl_b32 s26, s20, 12")
    for kk in range(4):
        a(f"v_add_u32 v{20+kk}, s26, v{16+kk}")
    if mat==1:
        a("v_lshrrev_b32 v13, 4, v63")
        a("v_and_b32 v14, 15, v63")
        a("v_lshrrev_b32 v14, 2, v14")
        a("v_lshrrev_b32 v15, 1, v13")
        a("v_lshlrev_b32 v15, 3, v15")
        a("v_add_u32 v14, v14, v15")
        a("v_mul_u32_u24 v14, 192, v14")
        a("v_and_b32 v13, 1, v13")
        a("v_lshlrev_b32 v13, 5, v13")
        a("v_and_b32 v15, 3, v63")
        a("v_lshlrev_b32 v15, 3, v15")
        a("v_add3_u32 v16, v14, v13, v15")
    ACC=64
    FA=24; FB=28
    lab_skip=a.newlabel("w_skip")
    for st in range(NSTAGE):
        slot=(st%NST)*SLOT
        issued=min(st+NST-1,NSTAGE)
        a(f"s_waitcnt vmcnt({6*(issued-st-1)})")
        a("s_barrier")
        if st in (0,1,6,11): stamp(a,{0:1,1:2,6:3,11:4}[st])
        if st+NST-1<NSTAGE:
            issue(st+NST-1)
        lab=a.newlabel("w_st")
        a("s_cmp_eq_u32 s20, 3")
        a(f"s_cbranch_scc1 {lab}")
        hi = slot//65536
        def rd(kk, buf):
            fa=FA+16*buf; fb=FB+16*buf
            off=slot
            va=20+kk
            emit_dsread(a,"ds_read_b128",f"v[{fa}:{fa+3}]",va,off)
            for cb in range(3):
                if mat==0:
                    emit_dsread(a,"ds_read_b128",f"v[{fb+4*cb}:{fb+4*cb+3}]",16+kk,off+12288+cb*4096)
                else:
                    o=off+12288+kk*16*192+cb*64
                    emit_dsread(a,"ds_read_b64_tr_b16",f"v[{fb+4*cb}:{fb+4*cb+1}]",16,o)
                    emit_dsread(a,"ds_read_b64_tr_b16",f"v[{fb+4*cb+2}:{fb+4*cb+3}]",16,o+768)
        nrd = 4 if mat==0 else 7
        rd(0,0)
        for kk in range(4):
            buf=kk&1
            if kk<3:
                rd(kk+1,buf^1)
                a(f"s_waitcnt lgkmcnt({nrd})")
            else:
                a("s_waitcnt lgkmcnt(0)")
            fa=FA+16*buf; fb=FB+16*buf
            for cb in range(3):
                acc=ACC+16*cb
                c = "0" if (st==0 and kk==0) else f"v[{acc}:{acc+15}]"
                a(f"v_mfma_f32_32x32x16_bf16 v[{acc}:{acc+15}], v[{fa}:{fa+3}], v[{fb+4*cb}:{fb+4*cb+3}], {c}")
        a.label(lab)
    stamp(a,5)
    a("s_cmp_eq_u32 s20, 3")
    a(f"s_cbranch_scc1 {lab_skip}")
    a("s_nop 7\ns_nop 7")
    a("s_mul_i32 s21, s32, 24")
    a("s_mul_i32 s22, s34, 3")
    a("s_add_u32 s21, s21, s22")
    a("s_mul_i32 s21, s21, 48*1024")
    a("s_mul_i32 s22, s33, 3")
    a("s_add_u32 s22, s22, s20")
    a("s_lshl_b32 s22, s22, 11")
    a("s_add_u32 s21, s21, s22")
    a(f"s_add_u32 s21, s21, {W_OFF}")
    a("v_lshlrev_b32 v12, 4, v63")
    for cb in range(3):
        acc=ACC+16*cb
        for s in range(2):
            for i in range(4):
                a(f"v_cvt_pk_bf16_f32 v{24+4*s+i}, v{acc+8*s+2*i}, v{acc+8*s+2*i+1}")
        for s in range(2):
            a(f"buffer_store_dwordx4 v[{24+4*s}:{27+4*s}], v12, s[16:19], s21 offen offset:{1024*s}")
        a(f"s_add_u32 s21, s21, {48*1024}")
        a("s_nop 1")
    a.label(lab_skip)
    a("s_branch k1_done")

def emit_dsread(a, op, dst, vaddr, off, tmp=None):
    if off < 65536:
        a(f"{op} {dst}, v{vaddr} offset:{off}")
    else:
        hi = (off//65536)*65536
        a(f"v_add_u32 v60, {hi}, v{vaddr}")
        a(f"{op} {dst}, v60 offset:{off-hi}")

def gen_k2(a):
    name="k2_kernel"
    kernel_header(a,name)
    emit_exit_guard(a,128,"k2_exit")
    stamp_init(a); stamp(a,0)
    a("s_load_dwordx2 s[36:37], s[0:1], 0")
    a("s_load_dwordx2 s[44:45], s[0:1], 56")
    a("v_and_b32 v1, 15, v0")
    a("v_lshrrev_b32 v2, 4, v0")
    a("v_lshrrev_b32 v3, 6, v0")
    a("s_nop 0")
    a("v_readfirstlane_b32 s20, v3")
    a("s_waitcnt lgkmcnt(0)")
    srd(a,8,36,X_BYTES)
    srd(a,16,44,WS_BYTES)
    gen_h_body(a, "s2")
    a.label("k2_done")
    stamp(a,9)
    stamp_flush(a,1)
    a.label("k2_exit")
    a("s_endpgm")
    kernel_desc(a,name,128,128)

def gen_h_body(a, s_tile):
    a(f"s_mul_i32 s21, {s_tile}, 16*1536")
    a("v_mul_u32_u24 v4, 1536, v1")
    a("v_lshrrev_b32 v5, 1, v2")
    a("v_lshlrev_b32 v5, 5, v5")
    a("v_and_b32 v6, 1, v2")
    a("v_lshlrev_b32 v7, 3, v6")
    a("v_add3_u32 v4, v4, v5, v7")
    for i in range(6):
        a(f"buffer_load_dwordx2 v[{64+4*i}:{65+4*i}], v4, s[8:11], s21 offen offset:{256*i}")
        a(f"buffer_load_dwordx2 v[{66+4*i}:{67+4*i}], v4, s[8:11], s21 offen offset:{256*i+16}")
    a(f"s_lshr_b32 s22, {s_tile}, 6")
    a("s_mul_i32 s22, s22, 2304*4")
    a(f"s_add_u32 s22, s22, {MOD_OFF}")
    a("v_lshrrev_b32 v5, 1, v2")
    a("v_lshlrev_b32 v5, 6, v5")
    a("v_lshlrev_b32 v7, 4, v6")
    a("v_add_u32 v8, v5, v7")
    a("s_waitcnt vmcnt(0)")
    stamp(a,1)
    for i in range(24):
        a(f"v_lshlrev_b32 v{16+2*i}, 16, v{64+i}")
        a(f"v_and_b32 v{17+2*i}, 0xffff0000, v{64+i}")
    a("v_add_f32 v9, v16, v17")
    for i in range(2,48):
        a(f"v_add_f32 v9, v9, v{16+i}")
    LR=0
    def reduce(lab):
        a("v_mov_b32 v10, v9\ns_nop 1\nv_permlane16_swap_b32 v9, v10\ns_nop 1\nv_add_f32 v9, v9, v10")
        a("v_mov_b32 v10, v9\ns_nop 1\nv_permlane32_swap_b32 v9, v10\ns_nop 1\nv_add_f32 v9, v9, v10")
        a("v_lshlrev_b32 v11, 2, v1")
        a(f"s_lshl_b32 s23, s20, 6")
        a(f"s_add_u32 s23, s23, {lab}")
        a("v_add_u32 v12, s23, v11")
        a("ds_write_b32 v12, v9")
        a("s_waitcnt lgkmcnt(0)")
        a("s_barrier")
        a(f"v_add_u32 v11, {lab}, v11")
        for w in range(4):
            a(f"ds_read_b32 v{112+w}, v11 offset:{64*w}")
        a("s_waitcnt lgkmcnt(0)")
        a("v_add_f32 v112, v112, v113\nv_add_f32 v114, v114, v115\nv_add_f32 v9, v112, v114")
    reduce(0)
    a("v_mul_f32 v9, 0x3aaaaaab, v9")
    for i in range(48):
        a(f"v_sub_f32 v{16+i}, v{16+i}, v9")
    a("v_mul_f32 v9, v16, v16")
    for i in range(1,48):
        a(f"v_fmac_f32 v9, v{16+i}, v{16+i}")
    reduce(256)
    a("v_mov_b32 v10, 0x3727c5ac")
    a("v_fmac_f32 v10, 0x3aaaaaab, v9")
    a("v_rsq_f32 v10, v10")
    a("s_nop 0")
    for i in range(48):
        a(f"v_mul_f32 v{16+i}, v10, v{16+i}")
    stamp(a,2)
    for half in range(2):
        for ii in range(3):
            i=3*half+ii
            for piece in range(2):
                r=64+16*ii+4*piece
                a(f"buffer_load_dwordx4 v[{r}:{r+3}], v8, s[16:19], s22 offen offset:{512*i+32*piece}")
        a(f"s_add_u32 s23, s22, {768*4}")
        for ii in range(3):
            i=3*half+ii
            for piece in range(2):
                r=64+16*ii+8+4*piece
                a(f"buffer_load_dwordx4 v[{r}:{r+3}], v8, s[16:19], s23 offen offset:{512*i+32*piece}")
        a("s_waitcnt vmcnt(0)")
        for ii in range(3):
            i=3*half+ii
            for e in range(8):
                a(f"v_fma_f32 v{16+8*i+e}, v{16+8*i+e}, v{64+16*ii+8+e}, v{64+16*ii+e}")
    stamp(a,3)
    a(f"s_lshr_b32 s21, {s_tile}, 1")
    a("s_mul_i32 s21, s21, 48*1024")
    a(f"s_and_b32 s23, {s_tile}, 1")
    a("s_lshl_b32 s23, s23, 8")
    a("s_add_u32 s21, s21, s23")
    a(f"s_add_u32 s21, s21, {H_OFF}")
    a("v_lshrrev_b32 v5, 1, v2")
    a("v_lshlrev_b32 v5, 10, v5")
    a("v_lshlrev_b32 v7, 9, v6")
    a("v_lshlrev_b32 v9, 4, v1")
    a("v_add3_u32 v5, v5, v7, v9")
    for i in range(6):
        for e in range(4):
            a(f"v_cvt_pk_bf16_f32 v{64+4*i+e}, v{16+8*i+2*e}, v{17+8*i+2*e}")
    for i in range(6):
        a(f"buffer_store_dwordx4 v[{64+4*i}:{67+4*i}], v5, s[16:19], s21 offen")
        a(f"s_add_u32 s21, s21, 8192")

def decode_bc(a):
    a("s_and_b32 s30, s2, 7")
    a("s_lshr_b32 s31, s2, 3")
    a("s_lshr_b32 s32, s30, 2")
    a("s_lshr_b32 s33, s30, 1")
    a("s_and_b32 s33, s33, 1")
    a("s_lshl_b32 s33, s33, 2")
    a("s_lshr_b32 s35, s31, 3")
    a("s_add_u32 s33, s33, s35")
    a("s_and_b32 s34, s30, 1")
    a("s_lshl_b32 s34, s34, 3")
    a("s_and_b32 s35, s31, 7")
    a("s_add_u32 s34, s34, s35")

def prologue_common(a):
    a("s_load_dwordx2 s[44:45], s[0:1], 56")
    a("v_and_b32 v255, 63, v0")
    a("v_lshrrev_b32 v1, 6, v0")
    a("v_lshlrev_b32 v254, 4, v255")
    a("v_readfirstlane_b32 s20, v1")
    decode_bc(a)

def hbase(a, sreg):
    a(f"s_lshl_b32 s{sreg}, s32, 5")
    a("s_lshl_b32 s35, s33, 2")
    a(f"s_add_u32 s{sreg}, s{sreg}, s35")
    a(f"s_add_u32 s{sreg}, s{sreg}, s20")
    a(f"s_mul_i32 s{sreg}, s{sreg}, 48*1024")
    a(f"s_add_u32 s{sreg}, s{sreg}, {H_OFF}")

def lds_bases(a, v0, v1, v2):
    a(f"v_mov_b32 v{v0}, v254")
    a(f"v_add_u32 v{v1}, 0x10000, v254")
    a(f"v_add_u32 v{v2}, 0x20000, v254")

def dsr(a, dst, off, bases):
    b = bases[off//65536]
    a(f"ds_read_b128 {dst}, v{b} offset:{off%65536}")

def gen_k3(a):
    name="k3_kernel"
    kernel_header(a,name)
    emit_exit_guard(a,256,"k3_exit")
    stamp_init(a); stamp(a,0)
    prologue_common(a)
    a("s_waitcnt lgkmcnt(0)")
    srd(a,16,44,WS_BYTES)
    hbase(a,21)
    a("s_mul_i32 s22, s34, 3*48*1024")
    a("s_lshl_b32 s35, s20, 10")
    a("s_add_u32 s22, s22, s35")
    a(f"s_add_u32 s22, s22, {W_OFF}")
    for blk in range(3):
        a(f"v_add_u32 v{1+blk}, {blk*(48*1024-1024)}, v254")
    a("s_mul_i32 s23, s20, 3072")
    lds_bases(a,4,5,6)
    def issue(st):
        a("s_mov_b32 m0, s23")
        a("s_add_u32 s23, s23, 12288")
        for blk in range(3):
            a(f"buffer_load_dwordx4 v{1+blk}, s[16:19], s22 offen offset:{1024*blk} lds")
        a("s_add_u32 s22, s22, 4096")
        for q in range(4):
            kb=4*st+q
            a(f"buffer_load_dwordx4 a[{4*kb}:{4*kb+3}], v254, s[16:19], s21 offen offset:{1024*q}")
        a("s_add_u32 s21, s21, 4096")
    NPRE=8
    for st in range(NPRE): issue(st)
    ACC=16; FB=64
    for role in ("t","u"):
        if role=="t":
            a("s_cmp_lt_u32 s34, 8")
            a("s_cbranch_scc0 k3_urole")
        else:
            a.label("k3_urole")
        def rd(kb):
            buf=kb&1
            for blk in range(3):
                off=((kb>>2)*12+(kb&3)*3+blk)*1024
                r=FB+12*buf+4*blk
                dsr(a,f"v[{r}:{r+3}]",off,(4,5,6))
        issued=NPRE
        for kb in range(48):
            st=kb>>2
            if kb==0:
                stamp(a,1)
                a(f"s_waitcnt vmcnt({7*(issued-1)})")
                a("s_barrier")
                stamp(a,2)
                rd(0)
            if kb+1<48:
                if (kb+1)%4==0:
                    nst=(kb+1)>>2
                    a(f"s_waitcnt vmcnt({7*(issued-nst-1)})")
                    a("s_barrier")
                    if nst in (4,8,11): stamp(a,{4:3,8:4,11:5}[nst])
                    if issued<12:
                        issue(issued); issued+=1
                rd(kb+1)
                a("s_waitcnt lgkmcnt(3)")
            else:
                a("s_waitcnt lgkmcnt(0)")
            buf=kb&1
            for blk in range(3):
                acc=ACC+16*blk
                r=FB+12*buf+4*blk
                c="0" if kb==0 else f"v[{acc}:{acc+15}]"
                if role=="t":
                    a(f"v_mfma_f32_32x32x16_bf16 v[{acc}:{acc+15}], v[{r}:{r+3}], a[{4*kb}:{4*kb+3}], {c}")
                else:
                    a(f"v_mfma_f32_32x32x16_bf16 v[{acc}:{acc+15}], a[{4*kb}:{4*kb+3}], v[{r}:{r+3}], {c}")
        a("s_nop 7\ns_nop 7")
        stamp(a,6)
        if role=="t":
            a("s_lshl_b32 s21, s32, 5\ns_lshl_b32 s35, s33, 2\ns_add_u32 s21, s21, s35\ns_add_u32 s21, s21, s20")
            a("s_mul_i32 s21, s21, 48*1024")
            a("s_mul_i32 s35, s34, 6*1024")
            a("s_add_u32 s21, s21, s35")
            a(f"s_add_u32 s21, s21, {T_OFF}")
            import math, struct
            sc=struct.unpack("<I",struct.pack("<f", math.log2(math.e)/math.sqrt(D)))[0]
            a(f"s_mov_b32 s24, {hex(sc)}")
            for blk in range(3):
                acc=ACC+16*blk
                for i in range(16):
                    a(f"v_mul_f32 v{acc+i}, s24, v{acc+i}")
                for s in range(2):
                    for i in range(4):
                        a(f"v_cvt_pk_bf16_f32 v{FB+8*(blk&1)+4*s+i}, v{acc+8*s+2*i}, v{acc+8*s+2*i+1}")
                for s in range(2):
                    r=FB+8*(blk&1)+4*s
                    a(f"buffer_store_dwordx4 v[{r}:{r+3}], v254, s[16:19], s21 offen offset:{1024*s}")
                a("s_add_u32 s21, s21, 2048")
            a("s_branch k3_done")
        else:
            a("s_mul_i32 s21, s32, 48*32*1024")
            a("s_sub_u32 s35, s34, 8")
            a("s_mul_i32 s35, s35, 6*32*1024")
            a("s_add_u32 s21, s21, s35")
            a("s_lshl_b32 s35, s33, 2\ns_add_u32 s35, s35, s20\ns_lshl_b32 s35, s35, 10")
            a("s_add_u32 s21, s21, s35")
            a(f"s_add_u32 s21, s21, {UT_OFF}")
            frag16_voff(a, 7)
            for blk in range(3):
                acc=ACC+16*blk
                for s in range(2):
                    for i in range(4):
                        a(f"v_cvt_pk_bf16_f32 v{FB+8*(blk&1)+4*s+i}, v{acc+8*s+2*i}, v{acc+8*s+2*i+1}")
                for s in range(2):
                    r=FB+8*(blk&1)+4*s
                    a(f"buffer_store_dwordx4 v[{r}:{r+3}], v7, s[16:19], s21 offen offset:{256*s}")
                a(f"s_add_u32 s21, s21, {2*32*1024}")
    a.label("k3_done")
    stamp(a,9)
    stamp_flush(a,2)
    a.label("k3_exit")
    a("s_endpgm")
    kernel_desc(a,name,512,256)

def frag16_voff(a, vreg):
    a(f"v_and_b32 v8, 15, v255")
    a(f"v_lshlrev_b32 v8, 4, v8")
    a(f"v_lshrrev_b32 v9, 4, v255")
    a(f"v_and_b32 v9, 1, v9")
    a(f"v_lshlrev_b32 v9, 15, v9")
    a(f"v_lshrrev_b32 v10, 5, v255")
    a(f"v_lshlrev_b32 v10, 9, v10")
    a(f"v_add3_u32 v{vreg}, v8, v9, v10")

def gen_k4(a):
    name="k4_kernel"
    kernel_header(a,name)
    emit_exit_guard(a,256,"k4_exit")
    stamp_init(a); stamp(a,0)
    prologue_common(a)
    a("s_waitcnt lgkmcnt(0)")
    srd(a,16,44,WS_BYTES)
    hbase(a,21)
    a("s_lshl_b32 s22, s32, 5\ns_lshl_b32 s35, s34, 1\ns_add_u32 s22, s22, s35")
    a("s_mul_i32 s22, s22, 48*1024")
    a("s_lshl_b32 s35, s20, 10")
    a("s_add_u32 s22, s22, s35")
    a(f"s_add_u32 s22, s22, {T_OFF}")
    for q in range(2):
        a(f"v_add_u32 v{1+q}, {q*(48*1024-1024)}, v254")
    a("s_lshl_b32 s23, s20, 11")
    lds_bases(a,4,5,6)
    def issue(st):
        a("s_mov_b32 m0, s23")
        a("s_add_u32 s23, s23, 8192")
        for q in range(2):
            a(f"buffer_load_dwordx4 v{1+q}, s[16:19], s22 offen offset:{1024*q} lds")
        a("s_add_u32 s22, s22, 4096")
        for q in range(4):
            kb=4*st+q
            a(f"buffer_load_dwordx4 a[{4*kb}:{4*kb+3}], v254, s[16:19], s21 offen offset:{1024*q}")
        a("s_add_u32 s21, s21, 4096")
    NPRE=10
    for st in range(NPRE): issue(st)
    ACC=16; FB=64
    def rd(kb):
        buf=kb&1
        for q in range(2):
            off=(kb*2+q)*1024
            r=FB+8*buf+4*q
            dsr(a,f"v[{r}:{r+3}]",off,(4,5,6))
    issued=NPRE
    for kb in range(48):
        if kb==0:
            stamp(a,1)
            a(f"s_waitcnt vmcnt({6*(issued-1)})")
            a("s_barrier")
            stamp(a,2)
            rd(0)
        if kb+1<48:
            if (kb+1)%4==0:
                nst=(kb+1)>>2
                a(f"s_waitcnt vmcnt({6*(issued-nst-1)})")
                a("s_barrier")
                if nst in (4,8,11): stamp(a,{4:3,8:4,11:5}[nst])
                if issued<12:
                    issue(issued); issued+=1
            rd(kb+1)
            a("s_waitcnt lgkmcnt(2)")
        else:
            a("s_waitcnt lgkmcnt(0)")
        buf=kb&1
        for q in range(2):
            acc=ACC+16*q
            r=FB+8*buf+4*q
            c="0" if kb==0 else f"v[{acc}:{acc+15}]"
            a(f"v_mfma_f32_32x32x16_bf16 v[{acc}:{acc+15}], a[{4*kb}:{4*kb+3}], v[{r}:{r+3}], {c}")
    a("s_nop 7\ns_nop 7")
    stamp(a,6)
    a("s_lshl_b32 s21, s32, 6\ns_lshl_b32 s35, s34, 2\ns_add_u32 s21, s21, s35")
    a("s_lshl_b32 s21, s21, 15")
    a("s_lshl_b32 s35, s33, 2\ns_add_u32 s35, s35, s20\ns_lshl_b32 s35, s35, 10")
    a("s_add_u32 s21, s21, s35")
    a(f"s_add_u32 s21, s21, {P_OFF}")
    frag16_voff(a, 7)
    for q in range(2):
        acc=ACC+16*q
        for i in range(16):
            a(f"v_exp_f32 v{acc+i}, v{acc+i}")
        a("s_nop 0")
        for s in range(2):
            for i in range(4):
                a(f"v_cvt_pk_bf16_f32 v{FB+8*q+4*s+i}, v{acc+8*s+2*i}, v{acc+8*s+2*i+1}")
        for s in range(2):
            r=FB+8*q+4*s
            a(f"buffer_store_dwordx4 v[{r}:{r+3}], v7, s[16:19], s21 offen offset:{256*s}")
        a(f"s_add_u32 s21, s21, {2*32*1024}")
    a.label("k4_done")
    stamp(a,9)
    stamp_flush(a,3)
    a.label("k4_exit")
    a("s_endpgm")
    kernel_desc(a,name,512,256)

def gen_k5(a):
    name="k5_kernel"
    kernel_header(a,name)
    emit_exit_guard(a,256,"k5_exit")
    stamp_init(a); stamp(a,0)
    a("s_load_dwordx2 s[36:37], s[0:1], 0")
    a("s_load_dwordx2 s[38:39], s[0:1], 40")
    prologue_common(a)
    a("s_waitcnt lgkmcnt(0)")
    srd(a,16,44,WS_BYTES)
    srd(a,8,36,X_BYTES)
    srd(a,12,38,OUT_BYTES)
    a("s_lshr_b32 s33, s30, 1\ns_and_b32 s33, s33, 1\ns_lshl_b32 s33, s33, 3\ns_and_b32 s35, s31, 7\ns_add_u32 s33, s33, s35")
    a("s_and_b32 s34, s30, 1\ns_lshl_b32 s34, s34, 2\ns_lshr_b32 s35, s31, 3\ns_add_u32 s34, s34, s35")
    a("s_lshr_b32 s40, s20, 1")
    a("s_and_b32 s41, s20, 1")
    a("s_lshl_b32 s22, s32, 6\ns_lshl_b32 s35, s33, 2\ns_add_u32 s22, s22, s35")
    a("s_lshl_b32 s22, s22, 15")
    a("s_lshl_b32 s35, s40, 4\ns_add_u32 s35, s35, s41")
    a("s_lshl_b32 s23, s35, 12")
    a("s_lshl_b32 s35, s35, 10")
    a("s_add_u32 s22, s22, s35")
    a(f"s_add_u32 s22, s22, {P_OFF}")
    for q in range(4):
        a(f"v_add_u32 v{1+q}, {q*(32*1024-1024)}, v254")
    a("s_mul_i32 s21, s32, 48\ns_mul_i32 s35, s34, 6\ns_add_u32 s21, s21, s35\ns_mul_i32 s35, s41, 3\ns_add_u32 s21, s21, s35")
    a("s_lshl_b32 s21, s21, 15")
    a("s_lshl_b32 s35, s40, 14")
    a("s_add_u32 s21, s21, s35")
    a(f"s_add_u32 s21, s21, {UT_OFF}")
    for aa in range(3):
        a(f"v_add_u32 v{5+aa}, {aa*32*1024}, v254")
    a("s_lshl_b32 s35, s40, 16")
    a("v_add_u32 v8, s35, v254")
    def issue(st):
        a("s_mov_b32 m0, s23")
        a("s_add_u32 s23, s23, 8192")
        for q in range(4):
            a(f"buffer_load_dwordx4 v{1+q}, s[16:19], s22 offen offset:{1024*q} lds")
        a("s_add_u32 s22, s22, 2048")
        for ss in range(2):
            s=2*st+ss
            for aa in range(3):
                r=(s*3+aa)*4
                a(f"buffer_load_dwordx4 a[{r}:{r+3}], v{5+aa}, s[16:19], s21 offen offset:{1024*ss}")
        a("s_add_u32 s21, s21, 2048")
    NPRE=6
    for st in range(NPRE): issue(st)
    for i in range(4):
        a(f"v_mov_b32 v{12+i}, 0x3f803f80")
    ACC=16
    LACC=64; FB=72
    def rd(s):
        buf=s&1
        for q in range(4):
            r=FB+16*buf+4*q
            a(f"ds_read_b128 v[{r}:{r+3}], v8 offset:{s*4096+q*1024}")
    issued=NPRE
    for nh in range(2):
        if nh==0:
            a("s_cmp_eq_u32 s41, 0")
            a("s_cbranch_scc0 k5_nh1")
        else:
            a.label("k5_nh1")
        issued=NPRE
        for s in range(16):
            if s==0:
                stamp(a,1)
                a(f"s_waitcnt vmcnt({10*(issued-1)})")
                a("s_barrier")
                stamp(a,2)
                rd(0)
            if s+1<16:
                if (s+1)%2==0:
                    nst=(s+1)>>1
                    a(f"s_waitcnt vmcnt({10*(issued-nst-1)})")
                    a("s_barrier")
                    if nst in (3,5,7): stamp(a,{3:3,5:4,7:5}[nst])
                    if issued<8:
                        issue(issued); issued+=1
                rd(s+1)
                a("s_waitcnt lgkmcnt(4)")
            else:
                a("s_waitcnt lgkmcnt(0)")
            buf=s&1
            for q in range(4):
                r=FB+16*buf+4*q
                for aa in range(3):
                    acc=ACC+12*q+4*aa
                    u=(s*3+aa)*4
                    c="0" if s==0 else f"v[{acc}:{acc+3}]"
                    a(f"v_mfma_f32_16x16x32_bf16 v[{acc}:{acc+3}], a[{u}:{u+3}], v[{r}:{r+3}], {c}")
                if (q>>1)==nh:
                    acc=LACC+4*(q&1)
                    c="0" if s==0 else f"v[{acc}:{acc+3}]"
                    a(f"v_mfma_f32_16x16x32_bf16 v[{acc}:{acc+3}], v[12:15], v[{r}:{r+3}], {c}")
        if nh==0: a("s_branch k5_epi")
    a.label("k5_epi")
    a("s_nop 7\ns_nop 1")
    stamp(a,6)
    a("s_barrier")
    a("s_mul_i32 s21, s20, 6144")
    a("v_add_u32 v9, s21, v254")
    a("s_cmp_eq_u32 s40, 0")
    a("s_cbranch_scc0 k5_send1")
    for i in range(6):
        r=ACC+24+4*i
        a(f"ds_write_b128 v9, v[{r}:{r+3}] offset:{1024*i}")
    a("s_branch k5_sent")
    a.label("k5_send1")
    for i in range(6):
        r=ACC+4*i
        a(f"ds_write_b128 v9, v[{r}:{r+3}] offset:{1024*i}")
    a("s_waitcnt lgkmcnt(0)")
    for i in range(24):
        a(f"v_mov_b32 v{ACC+i}, v{ACC+24+i}")
    a.label("k5_sent")
    a("v_and_b32 v10, 15, v255")
    a("v_lshlrev_b32 v10, 2, v10")
    a("s_lshl_b32 s21, s40, 8\ns_lshl_b32 s35, s41, 7\ns_add_u32 s21, s21, s35\ns_add_u32 s21, s21, 32768")
    a("v_add_u32 v11, s21, v10")
    a("ds_write_b32 v11, v64")
    a("ds_write_b32 v11, v68 offset:64")
    a("s_waitcnt lgkmcnt(0)")
    a("s_barrier")
    a("s_xor_b32 s21, s20, 2\ns_mul_i32 s21, s21, 6144")
    a("v_add_u32 v9, s21, v254")
    for i in range(6):
        r=40+4*i
        a(f"ds_read_b128 v[{r}:{r+3}], v9 offset:{1024*i}")
    a("s_lshl_b32 s21, s40, 7\ns_add_u32 s21, s21, 32768")
    a("v_add_u32 v11, s21, v10")
    a("ds_read_b32 v64, v11\nds_read_b32 v65, v11 offset:64\nds_read_b32 v66, v11 offset:256\nds_read_b32 v67, v11 offset:320")
    a("s_lshl_b32 s21, s32, 10\ns_lshl_b32 s35, s33, 6\ns_add_u32 s21, s21, s35\ns_lshl_b32 s35, s40, 5\ns_add_u32 s21, s21, s35")
    a("s_mul_i32 s21, s21, 1536")
    a("s_mul_i32 s35, s34, 192\ns_add_u32 s21, s21, s35\ns_mul_i32 s35, s41, 96\ns_add_u32 s21, s21, s35")
    a("v_and_b32 v72, 15, v255")
    a("v_mul_u32_u24 v72, 1536, v72")
    a("v_lshrrev_b32 v73, 4, v255")
    a("v_lshlrev_b32 v74, 3, v73")
    a("v_add_u32 v72, v72, v74")
    a(f"v_add_u32 v75, {16*1536}, v72")
    for qq in range(2):
        for nb in range(3):
            r=76+6*qq+2*nb
            a(f"buffer_load_dwordx2 v[{r}:{r+1}], v{72 if qq==0 else 75}, s[8:11], s21 offen offset:{32*nb}")
    a("s_mul_i32 s22, s32, 2304*4\ns_mul_i32 s35, s34, 96*4\ns_add_u32 s22, s22, s35\ns_mul_i32 s35, s41, 48*4\ns_add_u32 s22, s22, s35")
    a(f"s_add_u32 s22, s22, {MOD_OFF+1536*4}")
    a("v_lshlrev_b32 v74, 4, v73")
    for nb in range(3):
        r=88+4*nb
        a(f"buffer_load_dwordx4 v[{r}:{r+3}], v74, s[16:19], s22 offen offset:{64*nb}")
    a("s_waitcnt lgkmcnt(0)")
    for i in range(24):
        a(f"v_add_f32 v{16+i}, v{16+i}, v{40+i}")
    a("v_add_f32 v64, v64, v66\nv_add_f32 v65, v65, v67")
    a("v_rcp_f32 v64, v64\nv_rcp_f32 v65, v65")
    a("s_nop 0")
    a("s_waitcnt vmcnt(0)")
    stamp(a,7)
    for qq in range(2):
        for nb in range(3):
            for r in range(4):
                acc=16+12*qq+4*nb+r
                a(f"v_mul_f32 v{acc}, v{acc}, v{64+qq}")
            xr=76+6*qq+2*nb
            a(f"v_lshlrev_b32 v100, 16, v{xr}\nv_and_b32 v101, 0xffff0000, v{xr}\nv_lshlrev_b32 v102, 16, v{xr+1}\nv_and_b32 v103, 0xffff0000, v{xr+1}")
            for r in range(4):
                acc=16+12*qq+4*nb+r
                a(f"v_fma_f32 v{acc}, v{acc}, v{88+4*nb+r}, v{100+r}")
            acc=16+12*qq+4*nb
            a(f"v_cvt_pk_bf16_f32 v{xr}, v{acc}, v{acc+1}\nv_cvt_pk_bf16_f32 v{xr+1}, v{acc+2}, v{acc+3}")
            a(f"buffer_store_dwordx2 v[{xr}:{xr+1}], v{72 if qq==0 else 75}, s[12:15], s21 offen offset:{32*nb}")
    a.label("k5_done")
    stamp(a,9)
    stamp_flush(a,4)
    a.label("k5_exit")
    a("s_endpgm")
    kernel_desc(a,name,512,256)

HEADER = open("standalone__dit_adaln_block__diffusion.s.ref").read().split("; Override")[0]

def build():
    a=Asm()
    launches=[("k1_kernel",256,147456),("k2_kernel",128,1024),("k3_kernel",256,147456),("k4_kernel",256,98304),("k5_kernel",256,131072)]
    hdr=HEADER
    for n,g,l in launches:
        hdr+=f"; @launch kernel={n} grid=({g},1,1) block=(256,1,1) lds={l}\n"
    hdr+='.amdgcn_target "amdgcn-amd-amdhsa--gfx950"\n'
    gen_k1(a); gen_k2(a); gen_k3(a); gen_k4(a); gen_k5(a)
    return hdr+a.text()

if __name__=="__main__":
    import sys
    if "--prof" in sys.argv:
        PROFILE_ON[0]=True; sys.argv.remove("--prof")
    out=sys.argv[1] if len(sys.argv)>1 else "standalone__dit_adaln_block__diffusion.s"
    open(out,"w").write(build())
    print("written",out)
```

```python
import v1, re
from common import *
base=v1.build()
def add_empty(txt):
    a=Asm()
    kernel_header(a,"e_kernel"); a("s_endpgm"); kernel_desc(a,"e_kernel",32,32)
    return txt+a.text()
lines=base.split("\n")
idx=[i for i,l in enumerate(lines) if l.startswith("; @launch")]
def with_launches(order):
    L=[l for l in lines]
    ll={re.search(r"kernel=(\w+)",lines[i]).group(1):lines[i] for i in idx}
    ll["e_kernel"]="; @launch kernel=e_kernel grid=(256,1,1) block=(256,1,1) lds=0"
    new=L[:idx[0]]+[ll[k] for k in order]+L[idx[-1]+1:]
    return add_empty("\n".join(new))
ks=["k1_kernel","k2_kernel","k3_kernel","k4_kernel","k5_kernel"]
open("va.s","w").write(with_launches(ks))
open("vb.s","w").write(with_launches(ks+["e_kernel"]))
open("vc.s","w").write(with_launches(["e_kernel"]+ks))
open("vd.s","w").write(with_launches(ks+["e_kernel"]*4))
open("ve.s","w").write(with_launches(ks[:2]+["k2_kernel"]+ks[2:]))
open("vf.s","w").write(with_launches(ks+ks))
```

```python
import math, struct, sys
from common import *

NAME = "standalone__dit_adaln_block__diffusion_kernel"

MODT_OFF = 0x20000
EPOCH_OFF = 0x40000
FL = FLAG_OFF
HF_OFF = FL
WF_OFF = FL + 16*128
TF_OFF = FL + 32*128
UF_OFF = FL + 48*128
PF_OFF = FL + 64*128

S_X, S_WQKV, S_WO, S_WS, S_WMOD, S_C, S_OUT, S_DBG = 4, 8, 12, 16, 40, 44, 48, 52
S_WAVE, S_XCD, S_IDX, S_B, S_R, S_J, S_NONCE = 20, 32, 33, 34, 35, 36, 37
S_JQ, S_JN, S_KH, S_NH = 56, 57, 58, 59
V_TID, V_LANE, V_L16 = 0, 255, 254
SPIN_MAX = 20000

def f32(x): return struct.unpack("<I", struct.pack("<f", x))[0]

class VM:
    def __init__(self, a): self.a=a; self.ops=[]
    def issue(self, text, tag):
        self.a(text); self.ops.append(tag)
    def wait(self, tag):
        idx=[i for i,t in enumerate(self.ops) if t==tag]
        if not idx: return
        n=len(self.ops)-1-idx[-1]
        self.a(f"s_waitcnt vmcnt({min(n,63)})")
        self.ops=self.ops[idx[-1]+1:]
    def wait_all(self):
        self.a("s_waitcnt vmcnt(0)"); self.ops=[]
    def copy(self):
        v=VM(self.a); v.ops=list(self.ops); return v

def srdr(r): return f"s[{r}:{r+3}]"

def emit_poll(a, vm, v_addr, v_tmp, lab, mask_status=False, s_status=None, only_wave0=True, extra_ok=None):
    done=a.newlabel("poll_done"); top=a.newlabel("poll_top")
    if only_wave0:
        a(f"s_cmp_eq_u32 s{S_WAVE}, 0")
        a(f"s_cbranch_scc0 {done}")
    a("s_mov_b32 s60, 0")
    a.label(top)
    a(f"buffer_load_dword v{v_tmp}, v{v_addr}, {srdr(S_WS)}, 0 offen sc1")
    a("s_add_u32 s60, s60, 1")
    a(f"s_cmp_gt_u32 s60, {SPIN_MAX}")
    a(f"s_cbranch_scc1 {done}")
    a("s_waitcnt vmcnt(0)")
    if mask_status:
        a(f"v_and_b32 v{v_tmp+1}, 0xfffffffd, v{v_tmp}")
        a(f"v_cmp_ne_u32 vcc, s{S_NONCE}, v{v_tmp+1}")
    else:
        a(f"v_cmp_ne_u32 vcc, s{S_NONCE}, v{v_tmp}")
    a("s_cmp_eq_u64 vcc, 0")
    a(f"s_cbranch_scc0 {top}")
    a.label(done)
    a("s_barrier")

def emit_publish(a, vm, s_off_flag, val="nonce"):
    a("s_barrier")
    lab=a.newlabel("pub_skip")
    a(f"s_cmp_eq_u32 s{S_WAVE}, 1")
    a(f"s_cbranch_scc0 {lab}")
    a(f"v_mov_b32 v1, s{S_NONCE}" if val=="nonce" else f"v_mov_b32 v1, {val}")
    a(f"v_mov_b32 v2, 0")
    a("s_mov_b64 s[62:63], exec")
    a("s_mov_b64 exec, 1")
    a(f"buffer_store_dword v1, v2, {srdr(S_WS)}, s{s_off_flag} offen sc1")
    a("s_mov_b64 exec, s[62:63]")
    a.label(lab)

def gen_prologue(a):
    a(f"s_cmp_ge_u32 s2, 256")
    a(f"s_cbranch_scc1 L_exit")
    stamp_init(a); stamp(a,0)
    a("s_load_dwordx4 s[64:67], s[0:1], 0")
    a("s_load_dwordx4 s[68:71], s[0:1], 16")
    a("s_load_dwordx4 s[72:75], s[0:1], 32")
    a("s_load_dwordx4 s[76:79], s[0:1], 48")
    a(f"v_and_b32 v{V_LANE}, 63, v0")
    a("v_lshrrev_b32 v1, 6, v0")
    a(f"v_lshlrev_b32 v{V_L16}, 4, v{V_LANE}")
    a(f"v_readfirstlane_b32 s{S_WAVE}, v1")
    a(f"s_and_b32 s{S_XCD}, s2, 7")
    a(f"s_lshr_b32 s{S_IDX}, s2, 3")
    a(f"s_lshr_b32 s{S_B}, s{S_XCD}, 2")
    a(f"s_lshr_b32 s{S_R}, s{S_XCD}, 1\ns_and_b32 s{S_R}, s{S_R}, 1\ns_lshl_b32 s{S_R}, s{S_R}, 2\ns_lshr_b32 s60, s{S_IDX}, 3\ns_add_u32 s{S_R}, s{S_R}, s60")
    a(f"s_and_b32 s{S_J}, s{S_XCD}, 1\ns_lshl_b32 s{S_J}, s{S_J}, 3\ns_and_b32 s60, s{S_IDX}, 7\ns_add_u32 s{S_J}, s{S_J}, s60")
    a(f"s_lshr_b32 s{S_JQ}, s{S_XCD}, 1\ns_and_b32 s{S_JQ}, s{S_JQ}, 1\ns_lshl_b32 s{S_JQ}, s{S_JQ}, 3\ns_and_b32 s60, s{S_IDX}, 7\ns_add_u32 s{S_JQ}, s{S_JQ}, s60")
    a(f"s_and_b32 s{S_JN}, s{S_XCD}, 1\ns_lshl_b32 s{S_JN}, s{S_JN}, 2\ns_lshr_b32 s60, s{S_IDX}, 3\ns_add_u32 s{S_JN}, s{S_JN}, s60")
    a(f"s_lshr_b32 s{S_KH}, s{S_WAVE}, 1\ns_and_b32 s{S_NH}, s{S_WAVE}, 1")
    a("s_waitcnt lgkmcnt(0)")
    srd(a,S_X,64,X_BYTES); srd(a,S_C,66,C_BYTES); srd(a,S_WQKV,68,WQKV_BYTES); srd(a,S_WO,70,WO_BYTES)
    srd(a,S_WMOD,72,WMOD_BYTES); srd(a,S_OUT,74,OUT_BYTES); srd(a,S_DBG,76,256); srd(a,S_WS,78,WS_BYTES)

def emit_epoch_load(a, vm):
    a(f"v_mov_b32 v250, {EPOCH_OFF}")
    vm.issue(f"buffer_load_dword v251, v250, {srdr(S_WS)}, 0 offen sc1","epoch")

def emit_epoch_use(a, vm):
    vm.wait("epoch")
    a("v_readfirstlane_b32 s60, v251")
    a("s_nop 3")
    a(f"s_and_b32 s60, s60, 0xfffffffc")
    a(f"s_add_u32 s{S_NONCE}, s60, 5")

def emit_dsr(a, op, dst, vaddr, off, vt=60):
    if off < 65536:
        a(f"{op} {dst}, v{vaddr} offset:{off}")
    else:
        hi=(off//65536)*65536
        a(f"v_add_u32 v{vt}, {hi}, v{vaddr}")
        a(f"{op} {dst}, v{vt} offset:{off-hi}")

def gen_wrole(a):
    vm=VM(a)
    W=S_WAVE
    a(f"s_lshr_b32 s21, s{S_XCD}, 2")
    a(f"s_lshr_b32 s22, s{S_XCD}, 1\ns_and_b32 s22, s22, 1\ns_lshl_b32 s60, s22, 2\ns_lshr_b32 s61, s{S_IDX}, 2\ns_add_u32 s22, s60, s61")
    a(f"s_and_b32 s23, s{S_XCD}, 1\ns_lshl_b32 s60, s23, 2\ns_and_b32 s61, s{S_IDX}, 3\ns_add_u32 s23, s60, s61")
    a(f"s_and_b32 s60, s{S_IDX}, 3\ns_lshr_b32 s61, s{S_IDX}, 2\ns_add_u32 s60, s60, s61\ns_and_b32 s60, s60, 3\ns_mul_i32 s24, s60, 3")
    a(f"s_lshr_b32 s60, s{S_XCD}, 1\ns_xor_b32 s60, s60, s{S_XCD}\ns_and_b32 s60, s60, 1\ns_add_u32 s24, s24, s60")
    L=V_LANE
    a(f"v_lshrrev_b32 v1, 3, v{L}\nv_and_b32 v2, 7, v{L}\nv_lshrrev_b32 v3, 1, v1\nv_xor_b32 v2, v2, v3")
    a("v_mul_u32_u24 v1, 4608, v1\nv_lshlrev_b32 v3, 4, v2\nv_add_u32 v4, v1, v3\nv_xor_b32 v3, 64, v3\nv_add_u32 v5, v1, v3")
    a(f"s_mul_i32 s25, s22, 96*4608\ns_mul_i32 s60, s{W}, 24*4608\ns_add_u32 s25, s25, s60\ns_mul_i32 s60, s21, 3072\ns_add_u32 s25, s25, s60")
    a(f"s_and_b32 s60, s{W}, 1\ns_cmp_eq_u32 s60, 0\ns_cselect_b64 vcc, -1, 0")
    a("v_cndmask_b32 v6, v5, v4, vcc\nv_cndmask_b32 v7, v4, v5, vcc\nv_mov_b32 v8, v6")
    a(f"v_add_u32 v7, {8*4608-1024}, v7\nv_add_u32 v8, {16*4608-2048}, v8")
    a("s_cmp_eq_u32 s21, 0")
    a("s_cbranch_scc0 w_setup2")
    a(f"s_mul_i32 s26, s23, 96*4608\ns_mul_i32 s60, s{W}, 24*4608\ns_add_u32 s26, s26, s60\ns_add_u32 s26, s26, 1536")
    a("v_mov_b32 v9, v6\nv_mov_b32 v10, v7\nv_mov_b32 v11, v8")
    a("s_branch w_main0")
    a.label("w_setup2")
    for mm in range(3):
        a(f"v_add_u32 v12, {64*mm}, v{L}\nv_mul_u32_u24 v13, 43691, v12\nv_lshrrev_b32 v13, 19, v13\nv_mul_u32_u24 v14, 12, v13\nv_sub_u32 v14, v12, v14")
        a(f"v_mul_u32_u24 v13, 1536, v13\nv_lshlrev_b32 v14, 4, v14\nv_add_u32 v{9+mm}, v13, v14")
        if mm: a(f"v_subrev_u32 v{9+mm}, {1024*mm}, v{9+mm}")
    a(f"s_mul_i32 s26, s{W}, 16*1536\ns_mul_i32 s60, s23, 192\ns_add_u32 s26, s26, s60")
    a("s_branch w_main1")
    for mat in (0,1):
        a.label(f"w_main{mat}")
        gen_wmain(a, vm.copy(), mat)

def gen_wmain(a, vm, mat):
    NST=6; SLOT=24576; NSTAGE=12
    W=S_WAVE; L=V_LANE
    srdB = srdr(S_WQKV) if mat==0 else srdr(S_WO)
    strideB = 128 if mat==0 else 64*1536
    a(f"s_mul_i32 s27, s{W}, 3072")
    def issue_ops(st):
        slot=(st%NST)*SLOT
        ops=[]
        def part_a():
            a(f"s_lshl_b32 s28, s24, 7\ns_add_u32 s28, s28, s25")
            a(f"s_add_u32 s60, s27, {slot}\ns_mov_b32 m0, s60\ns_nop 0")
            for mm in range(3):
                vm.issue(f"buffer_load_dwordx4 v{6+mm}, {srdr(S_WQKV)}, s28 offen offset:{1024*mm} lds", ("st",st))
        def part_b():
            a(f"s_mul_i32 s29, s24, {strideB}\ns_add_u32 s29, s29, s26")
            a(f"s_add_u32 s60, s27, {slot+12288}\ns_mov_b32 m0, s60\ns_nop 0")
            for mm in range(3):
                vm.issue(f"buffer_load_dwordx4 v{9+mm}, {srdB}, s29 offen offset:{1024*mm} lds", ("st",st))
            a("s_add_u32 s24, s24, 1\ns_cmp_eq_u32 s24, 12\ns_cselect_b32 s24, 0, s24")
        return [part_a, part_b]
    for st in range(4):
        for f in issue_ops(st): f()
    emit_epoch_load(a, vm)
    stamp(a,1)
    a(f"v_and_b32 v12, 31, v{L}\nv_lshrrev_b32 v13, 5, v{L}\nv_lshrrev_b32 v14, 1, v12\nv_and_b32 v14, 7, v14\nv_xor_b32 v14, v14, v13")
    a("v_lshlrev_b32 v14, 4, v14\nv_lshlrev_b32 v12, 7, v12\nv_add_u32 v12, v12, v14")
    for kk in range(4): a(f"v_xor_b32 v{16+kk}, {32*kk}, v12")
    a(f"s_lshl_b32 s60, s{W}, 12")
    for kk in range(4): a(f"v_add_u32 v{20+kk}, s60, v{16+kk}")
    if mat==1:
        a(f"v_lshrrev_b32 v13, 4, v{L}\nv_and_b32 v14, 15, v{L}\nv_lshrrev_b32 v14, 2, v14\nv_lshrrev_b32 v15, 1, v13\nv_lshlrev_b32 v15, 3, v15\nv_add_u32 v14, v14, v15")
        a(f"v_mul_u32_u24 v14, 192, v14\nv_and_b32 v13, 1, v13\nv_lshlrev_b32 v13, 5, v13\nv_and_b32 v15, 3, v{L}\nv_lshlrev_b32 v15, 3, v15\nv_add3_u32 v16, v14, v13, v15")
    ACC=72; FR=24
    nrd = 4 if mat==0 else 7
    def rd(step):
        st,kk=divmod(step,4)
        off=(st%NST)*SLOT
        fa=FR+16*(step%3); fb=fa+4
        emit_dsr(a,"ds_read_b128",f"v[{fa}:{fa+3}]",20+kk,off,vt=249)
        for cb in range(3):
            if mat==0:
                emit_dsr(a,"ds_read_b128",f"v[{fb+4*cb}:{fb+4*cb+3}]",16+kk,off+12288+cb*4096,vt=248)
            else:
                o=off+12288+kk*16*192+cb*64
                emit_dsr(a,"ds_read_b64_tr_b16",f"v[{fb+4*cb}:{fb+4*cb+1}]",16,o,vt=248)
                emit_dsr(a,"ds_read_b64_tr_b16",f"v[{fb+4*cb+2}:{fb+4*cb+3}]",16,o+768,vt=248)
    def stage_sync(vm_, st):
        vm_.wait(("st",st))
        a("s_barrier")
    lab3=a.newlabel("w_wave3"); labj=a.newlabel("w_join")
    a(f"s_cmp_eq_u32 s{W}, 3")
    a(f"s_cbranch_scc1 {lab3}")
    vmc=vm.copy()
    vm_outer=vm
    vm=vmc
    pend=[]
    def mkissue(vmx, st):
        nonlocal vm
        vm=vmx
        return issue_ops(st)
    stage_sync(vmc,0); stamp(a,2)
    pend=mkissue(vmc,4)
    rd(0); rd(1)
    for step in range(48):
        nx=step+2
        if nx<48:
            if nx%4==0:
                st=nx//4
                for f in pend: f()
                pend=[]
                stage_sync(vmc,st)
                if st in (4,8,11): stamp(a,{4:3,8:4,11:5}[st])
                if st+4<NSTAGE: pend=mkissue(vmc,st+4)
            rd(nx)
            a(f"s_waitcnt lgkmcnt({2*nrd})")
        elif nx==48:
            a(f"s_waitcnt lgkmcnt({nrd})")
        else:
            a("s_waitcnt lgkmcnt(0)")
        fa=FR+16*(step%3); fb=fa+4
        for cb in range(3):
            acc=ACC+16*cb
            c="0" if step==0 else f"v[{acc}:{acc+15}]"
            a(f"v_mfma_f32_32x32x16_bf16 v[{acc}:{acc+15}], v[{fa}:{fa+3}], v[{fb+4*cb}:{fb+4*cb+3}], {c}")
            if cb==0 and pend:
                pend.pop(0)()
    stamp(a,6)
    emit_epoch_use(a, vmc)
    a("s_nop 7\ns_nop 3")
    a(f"s_mul_i32 s25, s21, 24\ns_mul_i32 s60, s23, 3\ns_add_u32 s25, s25, s60\ns_mul_i32 s25, s25, 48*1024")
    a(f"s_mul_i32 s60, s22, 3\ns_add_u32 s60, s60, s{W}\ns_lshl_b32 s60, s60, 11\ns_add_u32 s25, s25, s60\ns_add_u32 s25, s25, {W_OFF}")
    for cb in range(3):
        acc=ACC+16*cb
        for s in range(2):
            for i in range(4):
                a(f"v_cvt_pk_bf16_f32 v{24+8*(cb&1)+4*s+i}, v{acc+8*s+2*i}, v{acc+8*s+2*i+1}")
        for s in range(2):
            r=24+8*(cb&1)+4*s
            vmc.issue(f"buffer_store_dwordx4 v[{r}:{r+3}], v{V_L16}, {srdr(S_WS)}, s25 offen offset:{1024*s} sc1","wst")
        a(f"s_add_u32 s25, s25, {48*1024}")
    vmc.wait_all()
    a(f"s_branch {labj}")
    a.label(lab3)
    vm3=vm_outer.copy()
    stage_sync(vm3,0)
    for f in mkissue(vm3,4): f()
    for st in range(1,NSTAGE):
        stage_sync(vm3,st)
        if st+4<NSTAGE:
            for f in mkissue(vm3,st+4): f()
    emit_epoch_use(a, vm3)
    vm3.wait_all()
    a.label(labj)
    stamp(a,7)
    a(f"s_lshl_b32 s60, s21, 3\ns_add_u32 s60, s60, s23\ns_lshl_b32 s60, s60, 7\ns_lshl_b32 s61, s22, 2\ns_add_u32 s60, s60, s61\ns_add_u32 s64, s60, {WF_OFF}")
    emit_publish(a, None, 64)
    a("s_branch L_phaseB")

LW, LS, LR, LRED, LMOD = 0, 24576, 28160, 28672, 29696

def gen_mtask(a, vm, s_tau, first):
    L=V_LANE; W=S_WAVE
    a(f"s_lshl_b32 s21, s{s_tau}, 5")
    a(f"v_lshrrev_b32 v1, 1, v{L}\nv_mul_u32_u24 v1, 9216, v1\nv_and_b32 v2, 1, v{L}\nv_lshlrev_b32 v2, 4, v2\nv_add_u32 v1, v1, v2")
    a(f"s_mul_i32 s22, s{W}, 192*9216\ns_add_u32 s22, s22, s21\ns_mul_i32 s23, s{W}, 192*32")
    a("v_and_b32 v3, 127, v0\nv_mul_u32_u24 v3, 12, v3\nv_lshrrev_b32 v4, 7, v0\nv_mul_u32_u24 v4, 1536, v4\nv_add_u32 v3, v3, v4")
    vm.issue(f"buffer_load_dwordx3 v[8:10], v3, {srdr(S_C)}, 0 offen","c")
    for m in range(6):
        a(f"s_mov_b32 m0, s23\ns_add_u32 s23, s23, 1024")
        vm.issue(f"buffer_load_dwordx4 v1, {srdr(S_WMOD)}, s22 offen lds","wm")
        a(f"s_add_u32 s22, s22, {32*9216}")
    if first: first()
    vm.wait("c")
    for i in range(3):
        a(f"v_lshlrev_b32 v{12+2*i}, 16, v{8+i}\nv_and_b32 v{13+2*i}, 0xffff0000, v{8+i}")
    a("s_mov_b32 s24, 0xbfb8aa3b")
    for i in range(6): a(f"v_mul_f32 v{20+i}, s24, v{12+i}")
    for i in range(6): a(f"v_exp_f32 v{20+i}, v{20+i}")
    a("s_nop 0")
    for i in range(6): a(f"v_add_f32 v{20+i}, 1.0, v{20+i}")
    for i in range(6): a(f"v_rcp_f32 v{20+i}, v{20+i}")
    a("s_nop 0")
    for i in range(6): a(f"v_mul_f32 v{20+i}, v{20+i}, v{12+i}")
    for i in range(3): a(f"v_cvt_pk_bf16_f32 v{8+i}, v{20+2*i}, v{21+2*i}")
    a(f"v_add_u32 v3, {LS}, v3")
    for i in range(3): a(f"ds_write_b32 v3, v{8+i} offset:{4*i}")
    a(f"v_lshrrev_b32 v4, 4, v{L}\nv_and_b32 v5, 1, v{L}\nv_mul_u32_u24 v5, 1536, v5\nv_lshlrev_b32 v6, 4, v4\nv_add_u32 v5, v5, v6")
    a(f"s_mul_i32 s24, s{W}, 192*2\ns_add_u32 s24, s24, {LS}\nv_add_u32 v5, s24, v5")
    a(f"v_and_b32 v6, 15, v{L}\nv_lshrrev_b32 v6, 2, v6\nv_lshlrev_b32 v7, 3, v4\nv_add_u32 v6, v6, v7\nv_lshlrev_b32 v6, 5, v6")
    a(f"v_and_b32 v7, 3, v{L}\nv_lshlrev_b32 v7, 3, v7\nv_add_u32 v6, v6, v7\ns_mul_i32 s24, s{W}, 192*32\nv_add_u32 v6, s24, v6")
    vm.wait("wm")
    a("s_waitcnt lgkmcnt(0)")
    stamp(a,1)
    a("s_barrier")
    for s in range(6):
        base=12+8*(s%3) if False else 12+8*(s%2)
    for s in range(6):
        r=64+8*s
        a(f"ds_read_b128 v[{r}:{r+3}], v5 offset:{64*s}")
        a(f"ds_read_b64_tr_b16 v[{r+4}:{r+5}], v6 offset:{1024*s}")
        a(f"ds_read_b64_tr_b16 v[{r+6}:{r+7}], v6 offset:{1024*s+128}")
        if s==3:
            pass
    for s in range(6):
        r=64+8*s
        a(f"s_waitcnt lgkmcnt({min(15,3*(5-s))})")
        c="0" if s==0 else "v[32:35]"
        a(f"v_mfma_f32_16x16x32_bf16 v[32:35], v[{r}:{r+3}], v[{r+4}:{r+7}], {c}")
    a(f"v_and_b32 v6, 15, v{L}\nv_lshlrev_b32 v6, 3, v6\ns_lshl_b32 s24, s{W}, 7\ns_add_u32 s24, s24, {LR}\nv_add_u32 v6, s24, v6")
    a("s_nop 3")
    a("s_mov_b64 s[26:27], exec\ns_mov_b64 exec, 0xffff")
    a("ds_write_b64 v6, v[32:33]")
    a("s_mov_b64 exec, s[26:27]")
    a("s_waitcnt lgkmcnt(0)")
    a("s_barrier")
    lab=a.newlabel("mt_skip")
    emit_epoch_use(a, vm)
    a(f"s_cmp_eq_u32 s{W}, 0")
    a(f"s_cbranch_scc0 {lab}")
    a(f"v_and_b32 v6, 15, v{L}\nv_lshrrev_b32 v7, 4, v{L}\nv_and_b32 v7, 1, v7\nv_lshlrev_b32 v8, 3, v6\nv_lshlrev_b32 v9, 2, v7\nv_add_u32 v8, v8, v9\nv_add_u32 v8, {LR}, v8")
    for w in range(4): a(f"ds_read_b32 v{12+w}, v8 offset:{128*w}")
    a(f"s_sub_u32 s24, s{s_tau}, 48\ns_cmp_lt_u32 s24, 48\ns_cselect_b32 s24, 1.0, 0")
    a("v_mul_u32_u24 v7, 2304*8, v7\nv_lshlrev_b32 v6, 3, v6\nv_add_u32 v7, v7, v6")
    a(f"s_lshl_b32 s25, s{s_tau}, 7\ns_add_u32 s25, s25, {MODT_OFF}")
    a("s_waitcnt lgkmcnt(0)")
    a("v_add_f32 v12, v12, v13\nv_add_f32 v14, v14, v15\nv_add_f32 v12, v12, v14\nv_add_f32 v12, s24, v12")
    a(f"v_mov_b32 v13, s{S_NONCE}")
    a("s_mov_b32 exec_lo, -1\ns_mov_b32 exec_hi, 0")
    a(f"buffer_store_dwordx2 v[12:13], v7, {srdr(S_WS)}, s25 offen sc1")
    a("s_mov_b64 exec, s[26:27]")
    a.label(lab)

def gen_mhrole(a):
    vm=VM(a); L=V_LANE; W=S_WAVE
    a(f"s_sub_u32 s39, s{S_IDX}, 16")
    a(f"s_lshl_b32 s38, s{S_XCD}, 4\ns_add_u32 s38, s38, s39")
    a("s_cmp_lt_u32 s39, 12")
    a("s_cbranch_scc0 mh_gate")
    a(f"s_lshr_b32 s30, s39, 2\ns_lshl_b32 s30, s30, 3\ns_add_u32 s30, s30, s{S_XCD}\ns_lshl_b32 s30, s30, 2\ns_and_b32 s60, s39, 3\ns_add_u32 s30, s30, s60")
    a("s_mov_b32 s31, 1")
    a("s_branch mh_go")
    a.label("mh_gate")
    a(f"s_add_u32 s30, s{S_XCD}, 24\ns_lshl_b32 s30, s30, 2\ns_sub_u32 s60, s39, 12\ns_add_u32 s30, s30, s60")
    a(f"s_cmp_lt_u32 s{S_XCD}, 4\ns_cselect_b32 s31, 2, 1")
    a.label("mh_go")
    XR=176
    def first():
        a("v_and_b32 v240, 15, v0\nv_lshrrev_b32 v241, 4, v0")
        a("s_mul_i32 s28, s38, 16*1536")
        a("v_mul_u32_u24 v242, 1536, v240\nv_lshlrev_b32 v243, 4, v241\nv_add_u32 v242, v242, v243")
        for i in range(6):
            vm.issue(f"buffer_load_dwordx4 v[{XR+4*i}:{XR+4*i+3}], v242, {srdr(S_X)}, s28 offen offset:{256*i}","x")
        emit_epoch_load(a, vm)
    gen_mtask(a, vm, 30, first)
    lab2=a.newlabel("mh_one")
    a("s_cmp_eq_u32 s31, 2")
    a(f"s_cbranch_scc0 {lab2}")
    a("s_barrier")
    a("s_add_u32 s30, s30, 32")
    vm2=VM(a)
    gen_mtask(a, vm2, 30, lambda: emit_epoch_load(a, vm2))
    a.label(lab2)
    stamp(a,2)
    a("s_waitcnt vmcnt(0)")
    for i in range(6):
        r=XR+4*i
        a(f"v_permlane16_swap_b32 v{r}, v{r+2}\nv_permlane16_swap_b32 v{r+1}, v{r+3}")
    a("s_nop 1")
    XF=64
    for i in range(24):
        a(f"v_lshlrev_b32 v{XF+2*i}, 16, v{XR+i}\nv_and_b32 v{XF+2*i+1}, 0xffff0000, v{XR+i}")
    def add_tree(dst, regs, op, sq=False):
        pass
    a(f"v_add_f32 v9, v{XF}, v{XF+1}\nv_add_f32 v10, v{XF+2}, v{XF+3}")
    for i in range(4,48,2):
        a(f"v_add_f32 v9, v9, v{XF+i}\nv_add_f32 v10, v10, v{XF+i+1}")
    a("v_add_f32 v9, v9, v10")
    def reduce(off):
        a("v_mov_b32 v10, v9\ns_nop 1\nv_permlane16_swap_b32 v9, v10\ns_nop 1\nv_add_f32 v9, v9, v10")
        a("v_mov_b32 v10, v9\ns_nop 1\nv_permlane32_swap_b32 v9, v10\ns_nop 1\nv_add_f32 v9, v9, v10")
        a(f"v_lshlrev_b32 v11, 2, v240\ns_lshl_b32 s23, s{W}, 6\ns_add_u32 s23, s23, {off}\nv_add_u32 v12, s23, v11")
        a("ds_write_b32 v12, v9\ns_waitcnt lgkmcnt(0)\ns_barrier")
        a(f"v_add_u32 v11, {off}, v11")
        for w in range(4): a(f"ds_read_b32 v{112+w}, v11 offset:{64*w}")
        a("s_waitcnt lgkmcnt(0)\nv_add_f32 v112, v112, v113\nv_add_f32 v114, v114, v115\nv_add_f32 v9, v112, v114")
    reduce(LRED)
    a("v_mul_f32 v9, 0x3aaaaaab, v9")
    for i in range(48): a(f"v_sub_f32 v{XF+i}, v{XF+i}, v9")
    a(f"v_mul_f32 v9, v{XF}, v{XF}\nv_mul_f32 v10, v{XF+1}, v{XF+1}")
    for i in range(2,48,2):
        a(f"v_fmac_f32 v9, v{XF+i}, v{XF+i}\nv_fmac_f32 v10, v{XF+i+1}, v{XF+i+1}")
    a("v_add_f32 v9, v9, v10")
    reduce(LRED+256)
    a("v_mov_b32 v10, 0x3727c5ac\nv_fmac_f32 v10, 0x3aaaaaab, v9\nv_rsq_f32 v10, v10\ns_nop 0")
    for i in range(48): a(f"v_mul_f32 v{XF+i}, v10, v{XF+i}")
    stamp(a,3)
    a("s_lshr_b32 s21, s38, 6\ns_mul_i32 s21, s21, 2304*8")
    a(f"s_add_u32 s21, s21, {MODT_OFF}")
    a("v_lshlrev_b32 v13, 4, v0")
    top=a.newlabel("mod_top"); done=a.newlabel("mod_done")
    a("s_mov_b32 s60, 0")
    a.label(top)
    for i in range(3):
        a(f"s_add_u32 s61, s21, {4096*i}")
        a(f"buffer_load_dwordx4 v[{16+4*i}:{19+4*i}], v13, {srdr(S_WS)}, s61 offen sc1")
    a(f"s_add_u32 s60, s60, 1\ns_cmp_gt_u32 s60, {SPIN_MAX}\ns_cbranch_scc1 {done}")
    a("s_waitcnt vmcnt(0)")
    a(f"v_cmp_ne_u32 vcc, s{S_NONCE}, v17")
    for r in (19,21,23,25,27):
        a(f"v_cmp_ne_u32 s[62:63], s{S_NONCE}, v{r}\ns_or_b64 vcc, vcc, s[62:63]")
    a(f"s_cmp_eq_u64 vcc, 0\ns_cbranch_scc0 {top}")
    a.label(done)
    a(f"v_lshlrev_b32 v13, 3, v0\nv_add_u32 v13, {LMOD}, v13")
    for i in range(3):
        a(f"v_mov_b32 v{17+4*i}, v{18+4*i}")
        a(f"ds_write_b64 v13, v[{16+4*i}:{17+4*i}] offset:{2048*i}")
    a("s_waitcnt lgkmcnt(0)\ns_barrier")
    stamp(a,4)
    a(f"v_lshrrev_b32 v5, 1, v241\nv_lshlrev_b32 v5, 6, v5\nv_and_b32 v6, 1, v241\nv_lshlrev_b32 v7, 4, v6\nv_add3_u32 v8, v5, v7, {LMOD}" if False else
      f"v_lshrrev_b32 v5, 1, v241\nv_lshlrev_b32 v5, 6, v5\nv_and_b32 v6, 1, v241\nv_lshlrev_b32 v7, 4, v6\nv_add_u32 v8, v5, v7\nv_add_u32 v8, {LMOD}, v8")
    def rdm(i):
        r=16+16*(i%3)
        a(f"ds_read_b128 v[{r}:{r+3}], v8 offset:{512*i}\nds_read_b128 v[{r+4}:{r+7}], v8 offset:{512*i+32}")
        a(f"ds_read_b128 v[{r+8}:{r+11}], v8 offset:{3072+512*i}\nds_read_b128 v[{r+12}:{r+15}], v8 offset:{3072+512*i+32}")
    rdm(0); rdm(1)
    a("s_lshr_b32 s21, s38, 1\ns_mul_i32 s21, s21, 48*1024\ns_and_b32 s23, s38, 1\ns_lshl_b32 s23, s23, 8\ns_add_u32 s21, s21, s23")
    a(f"s_add_u32 s21, s21, {H_OFF}")
    a("v_lshrrev_b32 v5, 1, v241\nv_lshlrev_b32 v5, 10, v5\nv_lshlrev_b32 v7, 9, v6\nv_lshlrev_b32 v9, 4, v240\nv_add3_u32 v5, v5, v7, v9")
    for i in range(6):
        if i+2<6: rdm(i+2); a("s_waitcnt lgkmcnt(8)")
        elif i+1<6: a("s_waitcnt lgkmcnt(4)")
        else: a("s_waitcnt lgkmcnt(0)")
        r=16+16*(i%3)
        for e in range(8):
            a(f"v_fma_f32 v{XF+8*i+e}, v{XF+8*i+e}, v{r+8+e}, v{r+e}")
        for e in range(4):
            a(f"v_cvt_pk_bf16_f32 v{XR+4*i+e}, v{XF+8*i+2*e}, v{XF+8*i+2*e+1}")
        a(f"buffer_store_dwordx4 v[{XR+4*i}:{XR+4*i+3}], v5, {srdr(S_WS)}, s21 offen sc1")
        a("s_add_u32 s21, s21, 8192")
    a("s_waitcnt vmcnt(0)")
    stamp(a,7)
    a(f"s_lshr_b32 s60, s38, 3\ns_lshl_b32 s60, s60, 7\ns_and_b32 s61, s38, 7\ns_lshl_b32 s61, s61, 2\ns_add_u32 s60, s60, s61\ns_add_u32 s64, s60, {HF_OFF}")
    emit_publish(a, None, 64)

def flag_addr2(a, vdst, s1, s2):
    a(f"v_and_b32 v{vdst}, 7, v{V_LANE}\nv_lshlrev_b32 v{vdst}, 2, v{vdst}")
    a(f"v_and_b32 v{vdst+1}, 8, v{V_LANE}\nv_cmp_eq_u32 vcc, 0, v{vdst+1}")
    a(f"v_mov_b32 v{vdst+1}, s{s2}\nv_mov_b32 v{vdst+2}, s{s1}")
    a(f"v_cndmask_b32 v{vdst+1}, v{vdst+1}, v{vdst+2}, vcc")
    a(f"v_add_u32 v{vdst}, v{vdst}, v{vdst+1}")

def dsr3(a, dst, off, bases):
    b=bases[off//65536]
    a(f"ds_read_b128 {dst}, v{b} offset:{off%65536}")

def frag16_voff(a, vreg):
    L=V_LANE
    a(f"v_and_b32 v8, 15, v{L}\nv_lshlrev_b32 v8, 4, v8\nv_lshrrev_b32 v9, 4, v{L}\nv_and_b32 v9, 1, v9\nv_lshlrev_b32 v9, 15, v9")
    a(f"v_lshrrev_b32 v10, 5, v{L}\nv_lshlrev_b32 v10, 9, v10\nv_add3_u32 v{vreg}, v8, v9, v10")

def gen_phaseB(a):
    W=S_WAVE
    a.label("L_phaseB")
    stamp(a,8)
    a(f"s_lshl_b32 s60, s{S_B}, 3\ns_add_u32 s60, s60, s{S_R}\ns_lshl_b32 s60, s60, 7\ns_add_u32 s64, s60, {HF_OFF}")
    a(f"s_lshl_b32 s60, s{S_J}, 7\ns_add_u32 s65, s60, {WF_OFF}")
    flag_addr2(a, 1, 64, 65)
    a(f"s_lshl_b32 s21, s{S_B}, 5\ns_lshl_b32 s60, s{S_R}, 2\ns_add_u32 s21, s21, s60\ns_add_u32 s21, s21, s{W}")
    a(f"s_mul_i32 s21, s21, 48*1024\ns_add_u32 s21, s21, {H_OFF}")
    a(f"s_mul_i32 s22, s{S_J}, 3*48*1024\ns_lshl_b32 s60, s{W}, 10\ns_add_u32 s22, s22, s60\ns_add_u32 s22, s22, {W_OFF}")
    a(f"s_mul_i32 s23, s{W}, 3072")
    for blk in range(3): a(f"v_add_u32 v{10+blk}, {blk*(48*1024-1024)}, v{V_L16}")
    a(f"v_mov_b32 v4, v{V_L16}\nv_add_u32 v5, 0x10000, v{V_L16}\nv_add_u32 v6, 0x20000, v{V_L16}")
    emit_poll(a, None, 1, 14, "pb")
    stampB(a,0)
    vm0=VM(a)
    def issue_list(vm, st):
        ops=[]
        def dma():
            a("s_mov_b32 m0, s23\ns_add_u32 s23, s23, 12288")
            for blk in range(3):
                vm.issue(f"buffer_load_dwordx4 v{10+blk}, {srdr(S_WS)}, s22 offen offset:{1024*blk} sc1 lds",("st",st))
            a("s_add_u32 s22, s22, 4096")
        ops.append(dma)
        def hl(q):
            def f():
                kb=4*st+q
                vm.issue(f"buffer_load_dwordx4 a[{4*kb}:{4*kb+3}], v{V_L16}, {srdr(S_WS)}, s21 offen offset:{1024*q} sc1",("st",st))
                if q==3: a("s_add_u32 s21, s21, 4096")
            return f
        for q in range(4): ops.append(hl(q))
        return ops
    NPRE=3
    for st in range(NPRE):
        for f in issue_list(vm0,st): f()
    ACC=16; FB=64
    for role in ("t","u"):
        vm=vm0.copy()
        if role=="t":
            a(f"s_cmp_lt_u32 s{S_J}, 8")
            a("s_cbranch_scc0 pb_urole")
        else:
            a.label("pb_urole")
        def rd(kb):
            for blk in range(3):
                off=((kb>>2)*12+(kb&3)*3+blk)*1024
                r=FB+12*(kb%3)+4*blk
                dsr3(a,f"v[{r}:{r+3}]",off,(4,5,6))
        vm.wait(("st",0)); a("s_barrier")
        stampB(a,1)
        pend=issue_list(vm,NPRE); nexts=NPRE+1
        rd(0); rd(1)
        for kb in range(48):
            nx=kb+2
            if nx<48:
                if nx%4==0:
                    st=nx//4
                    for f in pend: f()
                    pend=[]
                    vm.wait(("st",st)); a("s_barrier")
                    if nexts<12:
                        pend=issue_list(vm,nexts); nexts+=1
                rd(nx)
                a("s_waitcnt lgkmcnt(6)")
            elif nx==48: a("s_waitcnt lgkmcnt(3)")
            else: a("s_waitcnt lgkmcnt(0)")
            for blk in range(3):
                acc=ACC+16*blk
                r=FB+12*(kb%3)+4*blk
                c="0" if kb==0 else f"v[{acc}:{acc+15}]"
                if role=="t":
                    a(f"v_mfma_f32_32x32x16_bf16 v[{acc}:{acc+15}], v[{r}:{r+3}], a[{4*kb}:{4*kb+3}], {c}")
                else:
                    a(f"v_mfma_f32_32x32x16_bf16 v[{acc}:{acc+15}], a[{4*kb}:{4*kb+3}], v[{r}:{r+3}], {c}")
                if blk<2 and pend: pend.pop(0)()
        stampB(a,2)
        if role=="t":
            a(f"s_lshl_b32 s21, s{S_B}, 5\ns_lshl_b32 s60, s{S_R}, 2\ns_add_u32 s21, s21, s60\ns_add_u32 s21, s21, s{W}\ns_mul_i32 s21, s21, 48*1024")
            a(f"s_mul_i32 s60, s{S_J}, 6*1024\ns_add_u32 s21, s21, s60\ns_add_u32 s21, s21, {T_OFF}")
            a(f"s_mov_b32 s24, {hex(f32(math.log2(math.e)/math.sqrt(D)))}")
            a(f"s_lshl_b32 s60, s{S_B}, 3\ns_add_u32 s60, s60, s{S_R}\ns_lshl_b32 s60, s60, 7\ns_lshl_b32 s61, s{S_J}, 2\ns_add_u32 s60, s60, s61\ns_add_u32 s64, s60, {TF_OFF}")
            a("s_nop 1")
            for blk in range(3):
                acc=ACC+16*blk
                for i in range(16): a(f"v_mul_f32 v{acc+i}, s24, v{acc+i}")
                for s in range(2):
                    for i in range(4):
                        a(f"v_cvt_pk_bf16_f32 v{FB+8*(blk&1)+4*s+i}, v{acc+8*s+2*i}, v{acc+8*s+2*i+1}")
                for s in range(2):
                    r=FB+8*(blk&1)+4*s
                    a(f"buffer_store_dwordx4 v[{r}:{r+3}], v{V_L16}, {srdr(S_WS)}, s21 offen offset:{1024*s} sc1")
                a("s_add_u32 s21, s21, 2048")
            a("s_branch pb_pub")
        else:
            a(f"s_mul_i32 s21, s{S_B}, 48*32*1024\ns_sub_u32 s60, s{S_J}, 8\ns_mul_i32 s60, s60, 6*32*1024\ns_add_u32 s21, s21, s60")
            a(f"s_lshl_b32 s60, s{S_R}, 2\ns_add_u32 s60, s60, s{W}\ns_lshl_b32 s60, s60, 10\ns_add_u32 s21, s21, s60\ns_add_u32 s21, s21, {UT_OFF}")
            a(f"s_lshl_b32 s60, s{S_B}, 3\ns_add_u32 s60, s60, s{S_J}\ns_sub_u32 s60, s60, 8\ns_lshl_b32 s60, s60, 7\ns_lshl_b32 s61, s{S_R}, 2\ns_add_u32 s60, s60, s61\ns_add_u32 s64, s60, {UF_OFF}")
            frag16_voff(a, 7)
            for blk in range(3):
                acc=ACC+16*blk
                for s in range(2):
                    for i in range(4):
                        a(f"v_cvt_pk_bf16_f32 v{FB+8*(blk&1)+4*s+i}, v{acc+8*s+2*i}, v{acc+8*s+2*i+1}")
                for s in range(2):
                    r=FB+8*(blk&1)+4*s
                    a(f"buffer_store_dwordx4 v[{r}:{r+3}], v7, {srdr(S_WS)}, s21 offen offset:{256*s} sc1")
                a(f"s_add_u32 s21, s21, {2*32*1024}")
    a.label("pb_pub")
    a("s_waitcnt vmcnt(0)")
    stampB(a,3)
    emit_publish(a, None, 64)

STB=[0]
def stampB(a, i):
    if PROFILE_ON[0]:
        a(f"s_memrealtime s[{SB2[i]}:{SB2[i]+1}]")
SB2={0:66,1:68,2:70,3:72,4:74,5:76,6:78,7:8,8:10,9:12}

def gen_phaseC(a):
    W=S_WAVE
    a(f"s_lshl_b32 s60, s{S_B}, 3\ns_lshr_b32 s61, s{S_J}, 1\ns_add_u32 s60, s60, s61\ns_lshl_b32 s60, s60, 7\ns_add_u32 s64, s60, {TF_OFF}")
    a(f"s_lshl_b32 s60, s{S_B}, 3\ns_add_u32 s60, s60, s{S_JN}\ns_lshl_b32 s60, s60, 7\ns_add_u32 s65, s60, {UF_OFF}")
    flag_addr2(a, 1, 64, 65)
    a(f"s_lshl_b32 s22, s{S_B}, 5\ns_lshl_b32 s60, s{S_J}, 1\ns_add_u32 s22, s22, s60\ns_mul_i32 s22, s22, 48*1024")
    a(f"s_lshl_b32 s60, s{W}, 11\ns_add_u32 s22, s22, s60\ns_add_u32 s22, s22, {T_OFF}")
    a(f"v_mov_b32 v10, v{V_L16}")
    a(f"v_add_u32 v11, {48*1024-1024}, v{V_L16}")
    a(f"v_add_u32 v12, {(1024-2048)&0xffffffff}, v{V_L16}" if False else f"v_subrev_u32 v12, 1024, v{V_L16}")
    a(f"v_add_u32 v13, {48*1024+1024-3072}, v{V_L16}")
    a(f"s_lshl_b32 s23, s{W}, 12")
    a(f"v_mov_b32 v4, v{V_L16}\nv_add_u32 v5, 0x10000, v{V_L16}")
    a(f"s_mul_i32 s21, s{S_B}, 48\ns_mul_i32 s60, s{S_JN}, 6\ns_add_u32 s21, s21, s60\ns_mul_i32 s60, s{S_NH}, 3\ns_add_u32 s21, s21, s60")
    a(f"s_lshl_b32 s21, s21, 15\ns_lshl_b32 s60, s{S_KH}, 14\ns_add_u32 s21, s21, s60\ns_add_u32 s21, s21, {UT_OFF}")
    for aa in range(3): a(f"v_add_u32 v{240+aa}, {aa*32*1024}, v{V_L16}")
    emit_poll(a, None, 1, 14, "pc")
    stampB(a,4)
    vm=VM(a)
    def tissue(st):
        a("s_mov_b32 m0, s23\ns_add_u32 s23, s23, 16384")
        for i in range(4):
            vm.issue(f"buffer_load_dwordx4 v{10+i}, {srdr(S_WS)}, s22 offen offset:{1024*i} sc1 lds",("t",st))
        a("s_add_u32 s22, s22, 8192")
    def uload(slot):
        s,aa=divmod(slot,3)
        vm.issue(f"buffer_load_dwordx4 a[{4*slot}:{4*slot+3}], v{240+aa}, {srdr(S_WS)}, s21 offen offset:{1024*(s%4)} sc1","u")
        if aa==2 and s%4==3: a("s_add_u32 s21, s21, 4096")
    NPRE=3
    for st in range(NPRE): tissue(st)
    nexts=NPRE
    ACC=16; FB=64; PF_=3
    def rd(kb):
        for q in range(2):
            off=(kb*2+q)*1024
            r=FB+8*(kb%4)+4*q
            dsr3(a,f"v[{r}:{r+3}]",off,(4,5))
    vm.wait(("t",0)); a("s_barrier")
    stampB(a,5)
    for k in range(PF_): rd(k)
    uslot=0
    USTART=8
    for kb in range(48):
        nx=kb+PF_
        if nx<48:
            if nx%8==0:
                st=nx//8
                vm.wait(("t",st)); a("s_barrier")
            rd(nx)
            a(f"s_waitcnt lgkmcnt({2*PF_})")
        else:
            a(f"s_waitcnt lgkmcnt({2*(47-kb)})")
        for q in range(2):
            acc=ACC+16*q
            r=FB+8*(kb%4)+4*q
            c="0" if kb==0 else f"v[{acc}:{acc+15}]"
            a(f"v_mfma_f32_32x32x16_bf16 v[{acc}:{acc+15}], a[{4*kb}:{4*kb+3}], v[{r}:{r+3}], {c}")
            if q==0 and kb%4==0 and nexts<6:
                tissue(nexts); nexts+=1
        if kb>=USTART and uslot<=kb-1:
            uload(uslot); uslot+=1
    stampB(a,6)
    a(f"s_lshl_b32 s25, s{S_B}, 6\ns_lshl_b32 s60, s{S_J}, 2\ns_add_u32 s25, s25, s60\ns_lshl_b32 s25, s25, 15")
    a(f"s_lshl_b32 s60, s{S_R}, 2\ns_add_u32 s60, s60, s{W}\ns_lshl_b32 s60, s60, 10\ns_add_u32 s25, s25, s60\ns_add_u32 s25, s25, {P_OFF}")
    a(f"s_lshl_b32 s60, s{S_B}, 4\ns_add_u32 s60, s60, s{S_J}\ns_lshl_b32 s60, s60, 7\ns_lshl_b32 s61, s{S_R}, 2\ns_add_u32 s60, s60, s61\ns_add_u32 s64, s60, {PF_OFF}")
    frag16_voff(a, 7)
    for q in range(2):
        acc=ACC+16*q
        for i in range(16): a(f"v_exp_f32 v{acc+i}, v{acc+i}")
        a("s_nop 0")
        for s in range(2):
            for i in range(4):
                a(f"v_cvt_pk_bf16_f32 v{FB+8*q+4*s+i}, v{acc+8*s+2*i}, v{acc+8*s+2*i+1}")
        for s in range(2):
            r=FB+8*q+4*s
            vm.issue(f"buffer_store_dwordx4 v[{r}:{r+3}], v7, {srdr(S_WS)}, s25 offen offset:{256*s} sc1","p")
        a(f"s_add_u32 s25, s25, {2*32*1024}")
    while uslot<48:
        uload(uslot); uslot+=1
    L=V_LANE
    a(f"s_lshl_b32 s26, s{S_B}, 10\ns_lshl_b32 s60, s{S_JQ}, 6\ns_add_u32 s26, s26, s60\ns_lshl_b32 s60, s{S_KH}, 5\ns_add_u32 s26, s26, s60\ns_mul_i32 s26, s26, 1536")
    a(f"s_mul_i32 s60, s{S_JN}, 192\ns_add_u32 s26, s26, s60\ns_mul_i32 s60, s{S_NH}, 96\ns_add_u32 s26, s26, s60")
    a(f"v_and_b32 v236, 15, v{L}\nv_mul_u32_u24 v236, 1536, v236\nv_lshrrev_b32 v237, 4, v{L}\nv_lshlrev_b32 v238, 3, v237\nv_add_u32 v236, v236, v238\nv_add_u32 v239, {16*1536}, v236")
    for qq in range(2):
        for nb in range(3):
            r=200+6*qq+2*nb
            vm.issue(f"buffer_load_dwordx2 v[{r}:{r+1}], v{236 if qq==0 else 239}, {srdr(S_X)}, s26 offen offset:{32*nb}","x")
    a(f"s_mul_i32 s27, s{S_B}, 2304\ns_mul_i32 s60, s{S_JN}, 96\ns_add_u32 s27, s27, s60\ns_mul_i32 s60, s{S_NH}, 48\ns_add_u32 s27, s27, s60\ns_add_u32 s27, s27, 1536\ns_lshl_b32 s27, s27, 3\ns_add_u32 s27, s27, {MODT_OFF}")
    a("v_lshlrev_b32 v238, 5, v237")
    for nb in range(3):
        for hh in range(2):
            r=212+8*nb+4*hh
            vm.issue(f"buffer_load_dwordx4 v[{r}:{r+3}], v238, {srdr(S_WS)}, s27 offen offset:{128*nb+16*hh} sc1","g")
    vm.wait("p")
    stampB(a,7)
    emit_publish(a, None, 64)
    return vm

def gen_phaseD(a, vm):
    W=S_WAVE; L=V_LANE
    a(f"s_lshl_b32 s60, s{S_B}, 4\ns_add_u32 s60, s60, s{S_JQ}\ns_lshl_b32 s60, s60, 7\ns_add_u32 s64, s60, {PF_OFF}")
    a(f"v_and_b32 v1, 7, v{L}\nv_lshlrev_b32 v1, 2, v1\nv_add_u32 v1, s64, v1")
    a(f"s_lshl_b32 s22, s{S_B}, 6\ns_lshl_b32 s60, s{S_JQ}, 2\ns_add_u32 s22, s22, s60\ns_lshl_b32 s22, s22, 15")
    a(f"s_lshl_b32 s60, s{S_KH}, 4\ns_add_u32 s60, s60, s{S_NH}\ns_lshl_b32 s23, s60, 12\ns_lshl_b32 s60, s60, 10\ns_add_u32 s22, s22, s60\ns_add_u32 s22, s22, {P_OFF}")
    for q in range(4): a(f"v_add_u32 v{10+q}, {q*(32*1024-1024)}, v{V_L16}")
    a(f"s_lshl_b32 s60, s{S_KH}, 16\nv_add_u32 v8, s60, v{V_L16}")
    for i in range(4): a(f"v_mov_b32 v{4+i}, 0x3f803f80")
    emit_poll(a, None, 1, 14, "pd", mask_status=True)
    stampB(a,8)
    def pissue(st):
        a("s_mov_b32 m0, s23\ns_add_u32 s23, s23, 8192")
        for q in range(4):
            vm.issue(f"buffer_load_dwordx4 v{10+q}, {srdr(S_WS)}, s22 offen offset:{1024*q} sc1 lds",("p",st))
        a("s_add_u32 s22, s22, 2048")
    NPRE=4
    for st in range(NPRE): pissue(st)
    ACC=16; LACC=64; FB=72
    def rd(s):
        for q in range(4):
            r=FB+16*(s&1)+4*q
            a(f"ds_read_b128 v[{r}:{r+3}], v8 offset:{s*4096+q*1024}")
    vm0=vm
    for nh in range(2):
        vm=vm0.copy()
        if nh==0:
            a(f"s_cmp_eq_u32 s{S_NH}, 0\ns_cbranch_scc0 pd_nh1")
        else:
            a.label("pd_nh1")
        def pissue2(st):
            a("s_mov_b32 m0, s23\ns_add_u32 s23, s23, 8192")
            for q in range(4):
                vm.issue(f"buffer_load_dwordx4 v{10+q}, {srdr(S_WS)}, s22 offen offset:{1024*q} sc1 lds",("p",st))
            a("s_add_u32 s22, s22, 2048")
        nexts=NPRE
        vm.wait(("p",0)); a("s_barrier")
        rd(0)
        for s in range(16):
            if s+1<16:
                if (s+1)%2==0:
                    st=(s+1)//2
                    vm.wait(("p",st)); a("s_barrier")
                rd(s+1)
                a("s_waitcnt lgkmcnt(4)")
            else:
                a("s_waitcnt lgkmcnt(0)")
            n=0
            for q in range(4):
                r=FB+16*(s&1)+4*q
                for aa in range(3):
                    acc=ACC+12*q+4*aa
                    u=(s*3+aa)*4
                    c="0" if s==0 else f"v[{acc}:{acc+3}]"
                    a(f"v_mfma_f32_16x16x32_bf16 v[{acc}:{acc+3}], a[{u}:{u+3}], v[{r}:{r+3}], {c}")
                if (q>>1)==nh:
                    acc=LACC+4*(q&1)
                    c="0" if s==0 else f"v[{acc}:{acc+3}]"
                    a(f"v_mfma_f32_16x16x32_bf16 v[{acc}:{acc+3}], v[4:7], v[{r}:{r+3}], {c}")
                if q==0 and s%2==0 and nexts<8:
                    pissue2(nexts); nexts+=1
        if nh==0: a("s_branch pd_epi")
    a.label("pd_epi")
    stampB(a,9)
    a(f"v_and_b32 v1, 31, v{L}\nv_lshlrev_b32 v1, 7, v1\nv_lshrrev_b32 v2, 5, v{L}\nv_lshlrev_b32 v2, 4, v2\nv_add3_u32 v1, v1, v2, 0")
    a(f"v_add_u32 v1, {PF_OFF}, v1")
    a("s_nop 3")
    a("s_barrier")
    a(f"s_mul_i32 s21, s{W}, 6144\nv_add_u32 v9, s21, v{V_L16}")
    a(f"s_cmp_eq_u32 s{S_KH}, 0\ns_cbranch_scc0 pd_send1")
    for i in range(6):
        r=ACC+24+4*i
        a(f"ds_write_b128 v9, v[{r}:{r+3}] offset:{1024*i}")
    a("s_branch pd_sent")
    a.label("pd_send1")
    for i in range(6):
        r=ACC+4*i
        a(f"ds_write_b128 v9, v[{r}:{r+3}] offset:{1024*i}")
    a("s_waitcnt lgkmcnt(0)")
    for i in range(24): a(f"v_mov_b32 v{ACC+i}, v{ACC+24+i}")
    a.label("pd_sent")
    a(f"v_and_b32 v10, 15, v{L}\nv_lshlrev_b32 v10, 2, v10")
    a(f"s_lshl_b32 s21, s{S_KH}, 8\ns_lshl_b32 s60, s{S_NH}, 7\ns_add_u32 s21, s21, s60\ns_add_u32 s21, s21, 32768\nv_add_u32 v11, s21, v10")
    a("ds_write_b32 v11, v64\nds_write_b32 v11, v68 offset:64")
    a("s_waitcnt lgkmcnt(0)\ns_barrier")
    a(f"s_xor_b32 s21, s{W}, 2\ns_mul_i32 s21, s21, 6144\nv_add_u32 v9, s21, v{V_L16}")
    for i in range(6):
        r=40+4*i
        a(f"ds_read_b128 v[{r}:{r+3}], v9 offset:{1024*i}")
    a(f"s_lshl_b32 s21, s{S_KH}, 7\ns_add_u32 s21, s21, 32768\nv_add_u32 v11, s21, v10")
    a("ds_read_b32 v64, v11\nds_read_b32 v65, v11 offset:64\nds_read_b32 v66, v11 offset:256\nds_read_b32 v67, v11 offset:320")
    gtop=a.newlabel("gate_top"); gdone=a.newlabel("gate_done")
    a("s_mov_b32 s60, 0")
    a("s_waitcnt vmcnt(0)")
    a.label(gtop)
    a(f"v_cmp_ne_u32 vcc, s{S_NONCE}, v213")
    for r in [212+8*nb+4*hh+o for nb in range(3) for hh in range(2) for o in (1,3)][1:]:
        a(f"v_cmp_ne_u32 s[62:63], s{S_NONCE}, v{r}\ns_or_b64 vcc, vcc, s[62:63]")
    a(f"s_cmp_eq_u64 vcc, 0\ns_cbranch_scc1 {gdone}")
    a(f"s_add_u32 s60, s60, 1\ns_cmp_gt_u32 s60, {SPIN_MAX}\ns_cbranch_scc1 {gdone}")
    for nb in range(3):
        for hh in range(2):
            r=212+8*nb+4*hh
            a(f"buffer_load_dwordx4 v[{r}:{r+3}], v238, {srdr(S_WS)}, s27 offen offset:{128*nb+16*hh} sc1")
    a(f"s_waitcnt vmcnt(0)\ns_branch {gtop}")
    a.label(gdone)
    a("s_waitcnt lgkmcnt(0)")
    for i in range(24): a(f"v_add_f32 v{16+i}, v{16+i}, v{40+i}")
    a("v_add_f32 v64, v64, v66\nv_add_f32 v65, v65, v67\nv_rcp_f32 v64, v64\nv_rcp_f32 v65, v65\ns_nop 0")
    for qq in range(2):
        for nb in range(3):
            for r in range(4):
                acc=16+12*qq+4*nb+r
                a(f"v_mul_f32 v{acc}, v{acc}, v{64+qq}")
            xr=200+6*qq+2*nb
            a(f"v_lshlrev_b32 v100, 16, v{xr}\nv_and_b32 v101, 0xffff0000, v{xr}\nv_lshlrev_b32 v102, 16, v{xr+1}\nv_and_b32 v103, 0xffff0000, v{xr+1}")
            for r in range(4):
                acc=16+12*qq+4*nb+r
                g=212+8*nb+4*(r>>1)+2*(r&1)
                a(f"v_fma_f32 v{acc}, v{acc}, v{g}, v{100+r}")
            acc=16+12*qq+4*nb
            a(f"v_cvt_pk_bf16_f32 v{xr}, v{acc}, v{acc+1}\nv_cvt_pk_bf16_f32 v{xr+1}, v{acc+2}, v{acc+3}")
            a(f"buffer_store_dwordx2 v[{xr}:{xr+1}], v{236 if qq==0 else 239}, {srdr(S_OUT)}, s26 offen offset:{32*nb}")
    lab=a.newlabel("ep_end"); top=a.newlabel("ep_top")
    a(f"s_or_b32 s60, s2, s{W}\ns_cmp_eq_u32 s60, 0\ns_cbranch_scc0 {lab}")
    a("s_mov_b32 s60, 0")
    a.label(top)
    a(f"buffer_load_dwordx4 v[12:15], v1, {srdr(S_WS)}, 0 offen sc1")
    a(f"s_add_u32 s60, s60, 1\ns_cmp_gt_u32 s60, {SPIN_MAX}\ns_cbranch_scc1 {lab}")
    a("s_waitcnt vmcnt(0)")
    for i in range(4): a(f"v_and_b32 v{12+i}, 0xfffffffd, v{12+i}")
    a(f"v_cmp_ne_u32 vcc, s{S_NONCE}, v12")
    for i in range(1,4): a(f"v_cmp_ne_u32 s[62:63], s{S_NONCE}, v{12+i}\ns_or_b64 vcc, vcc, s[62:63]")
    a(f"s_cmp_eq_u64 vcc, 0\ns_cbranch_scc0 {top}")
    a(f"v_mov_b32 v12, s{S_NONCE}\nv_mov_b32 v13, {EPOCH_OFF}")
    a("s_mov_b64 exec, 1")
    a(f"buffer_store_dword v12, v13, {srdr(S_WS)}, 0 offen sc1")
    a.label(lab)

def flush_stamps(a):
    if not PROFILE_ON[0]: return
    lab=a.newlabel("stamp_skip")
    a("s_waitcnt lgkmcnt(0)")
    a("s_mov_b64 exec, -1")
    a(f"v_cmp_eq_u32 vcc, 0, v0\ns_and_saveexec_b64 s[62:63], vcc\ns_cbranch_execz {lab}")
    a(f"s_lshl_b32 s60, s2, 7\ns_add_u32 s60, s60, {STAMP_OFF}\nv_mov_b32 v1, 0")
    regs=[80+2*i for i in range(10)]+[SB2[i] for i in range(10)]
    for i,r in enumerate(regs):
        a(f"v_mov_b32 v2, s{r}\nbuffer_store_dword v2, v1, {srdr(S_WS)}, s60 offen offset:{4*i}\ns_nop 1")
    a("s_waitcnt vmcnt(0)\ns_memrealtime s[64:65]\ns_waitcnt lgkmcnt(0)\nv_mov_b32 v2, s64")
    a(f"buffer_store_dword v2, v1, {srdr(S_WS)}, s60 offen offset:80")
    a.label(lab)

HEADER = open("standalone__dit_adaln_block__diffusion.s.ref").read().split("; Override")[0]

def build():
    a=Asm()
    kernel_header(a,NAME)
    gen_prologue(a)
    a(f"s_cmp_lt_u32 s{S_IDX}, 16")
    a("s_cbranch_scc0 L_mh")
    gen_wrole(a)
    a.label("L_mh")
    gen_mhrole(a)
    gen_phaseB(a)
    vm=gen_phaseC(a)
    gen_phaseD(a, vm)
    flush_stamps(a)
    a.label("L_exit")
    a("s_endpgm")
    kernel_desc(a,NAME,512,256)
    hdr=HEADER+"; @launch grid=(256,1,1) block=(256,1,1) lds=163840\n"+'.amdgcn_target "amdgcn-amd-amdhsa--gfx950"\n'
    return hdr+a.text()

if __name__=="__main__":
    if "--prof" in sys.argv:
        PROFILE_ON[0]=True; sys.argv.remove("--prof")
    out=sys.argv[1] if len(sys.argv)>1 else "standalone__dit_adaln_block__diffusion.s"
    open(out,"w").write(build())
    print("written",out)
```

```python
import sys
def desc(name, vg=512, acc=256):
    return f"""
.section .rodata,"a"
.p2align 6
.amdhsa_kernel {name}
  .amdhsa_next_free_vgpr {vg}
  .amdhsa_next_free_sgpr 102
  .amdhsa_accum_offset {acc}
  .amdhsa_group_segment_fixed_size 0
  .amdhsa_kernarg_size 64
  .amdhsa_user_sgpr_count 2
  .amdhsa_user_sgpr_kernarg_segment_ptr 1
  .amdhsa_system_sgpr_workgroup_id_x 1
.end_amdhsa_kernel
.text
"""
def kern(name, nwaves, mode, n1, n2, share, flags="", depth=60, passes=1):
    L=[]
    A=L.append
    A(f".globl {name}\n.p2align 8\n.type {name},@function\n{name}:")
    A("s_load_dwordx2 s[4:5], s[0:1], 0")
    A("s_load_dwordx2 s[6:7], s[0:1], 56")
    A("s_memrealtime s[10:11]")
    A("s_memtime s[12:13]")
    A("v_lshrrev_b32 v1, 6, v0")
    A("v_and_b32 v2, 63, v0")
    A("s_nop 0")
    A("v_readfirstlane_b32 s20, v1")
    A("s_and_b32 s21, s2, 7")
    A("s_lshr_b32 s22, s2, 3")
    if share=='b':
        A("s_lshr_b32 s23, s22, 3")
        A("s_lshl_b32 s24, s21, 2")
        A("s_add_u32 s23, s23, s24")
        A("s_lshr_b32 s24, s21, 1")
        A("s_lshl_b32 s24, s24, 2")
        A("s_lshr_b32 s23, s22, 3")
        A("s_add_u32 s23, s23, s24")
        A("s_and_b32 s24, s21, 1")
        A("s_lshl_b32 s24, s24, 3")
        A("s_and_b32 s25, s22, 7")
        A("s_add_u32 s24, s24, s25")
    elif share=='none':
        A("s_mov_b32 s23, s2"); A("s_mov_b32 s24, s2")
    elif share=='all':
        A("s_mov_b32 s23, 0"); A("s_mov_b32 s24, 0")
    elif share=='xcd':
        A("s_mov_b32 s23, s21"); A("s_mov_b32 s24, s21")
    A(f"s_mul_i32 s23, s23, {n1*1024}")
    A(f"s_mul_i32 s24, s24, {n2*1024}")
    A(f"s_add_u32 s24, s24, {128<<20}")
    A("s_waitcnt lgkmcnt(0)")
    A("s_mov_b32 s8, s4\ns_mov_b32 s9, s5\ns_mov_b32 s10, 0x20000000\ns_mov_b32 s11, 0x20000")
    L[:] = [x.replace("s_memrealtime s[10:11]","s_memrealtime s[30:31]").replace("s_memtime s[12:13]","s_memtime s[32:33]") for x in L]
    A("v_lshlrev_b32 v2, 4, v2")
    A(f"s_lshl_b32 s26, s20, 10")
    A("v_add_u32 v2, s26, v2")
    A("v_add_u32 v3, s23, v2")
    A("v_add_u32 v4, s24, v2")
    tot = n1+n2
    per1 = n1//nwaves; per2 = n2//nwaves
    step = nwaves*1024
    A("s_mov_b32 s40, 0")
    A(f"{name}_pass:")
    seq=[]
    i1=i2=0
    while i1<per1 or i2<per2:
        if i1<per1 and (i2>=per2 or i1*per2<=i2*per1):
            seq.append((3,i1)); i1+=1
        else:
            seq.append((4,i2)); i2+=1
    A(f"s_lshl_b32 s27, s20, 10")
    cnt=0
    for (vr,i) in seq:
        off=i*step
        A(f"s_mov_b32 s28, {off}")
        if mode=='reg':
            r=8+4*(cnt%60)
            A(f"buffer_load_dwordx4 v[{r}:{r+3}], v{vr}, s[8:11], s28 offen {flags}")
        else:
            ldsoff=(cnt%(128//nwaves))*step
            A(f"s_add_u32 s29, s27, {ldsoff}")
            A("s_mov_b32 m0, s29")
            A("s_nop 0")
            A(f"buffer_load_dwordx4 v{vr}, s[8:11], s28 offen {flags} lds")
        cnt+=1
        if cnt>=depth:
            A(f"s_waitcnt vmcnt({depth-1})")
    A("s_waitcnt vmcnt(0)")
    A("s_barrier")
    A("s_add_u32 s40, s40, 1")
    A("s_cmp_eq_u32 s40, 1")
    A(f"s_cbranch_scc0 {name}_n1")
    A("s_memtime s[34:35]")
    A("s_memrealtime s[36:37]")
    A("s_waitcnt lgkmcnt(0)")
    A(f"{name}_n1:")
    A(f"s_cmp_lt_u32 s40, {passes}")
    A(f"s_cbranch_scc1 {name}_pass")
    A("s_memtime s[42:43]")
    A("s_waitcnt lgkmcnt(0)")
    A("s_sub_u32 s44, s34, s32")
    A("s_sub_u32 s45, s42, s34")
    A("v_mov_b32 v4, s44\nv_mov_b32 v5, s30\nv_mov_b32 v6, s36\nv_mov_b32 v7, s45")
    A("s_lshl_b32 s3, s2, 4\nv_mov_b32 v8, s3")
    A("v_cmp_eq_u32 vcc, 0, v0\ns_and_saveexec_b64 s[14:15], vcc")
    A(f"s_cbranch_execz {name}_done")
    A("global_store_dwordx4 v8, v[4:7], s[6:7]")
    A(f"{name}_done:\ns_endpgm")
    return "\n".join(L)+desc(name, 512 if nwaves==4 else 256, 256 if nwaves==4 else 256)

if __name__!="__main__": raise_=None
cfgs=[]
for nw in (4,8):
  for mode in ('reg','lds'):
    for share in ('b','xcd','none'):
      for fl in ('','sc1'):
        nm=f"bw_{nw}_{mode}_{share}_{fl or 'pl'}_kernel"
        cfgs.append((nm,nw,mode,192,144,share,fl))
out=[]
for (nm,nw,mode,n1,n2,share,fl) in cfgs:
    out.append(kern(nm,nw,mode,n1,n2,share,fl,passes=2))
hdr="".join(f"; @launch kernel={c[0]} grid=(256,1,1) block=({c[1]*64},1,1) lds=163840\n" for c in cfgs)
open("bw.s","w").write(hdr+'.amdgcn_target "amdgcn-amd-amdhsa--gfx950"\n.text\n'+"\n".join(out))
open("bw_names.txt","w").write("\n".join(f"{c[0]} {c[1]}" for c in cfgs))
```

```python
from gen_bw import desc
def kern(name, d, delta, rot, withh=True, warm=0, flags="sc1", nmf=12):
    L=[];A=L.append
    A(f".globl {name}\n.p2align 8\n.type {name},@function\n{name}:")
    A("s_load_dwordx2 s[4:5], s[0:1], 0")
    A("s_load_dwordx2 s[6:7], s[0:1], 56")
    A("v_lshrrev_b32 v1, 6, v0\nv_and_b32 v2, 63, v0\ns_nop 0\nv_readfirstlane_b32 s20, v1")
    A("s_and_b32 s21, s2, 7\ns_lshr_b32 s22, s2, 3")
    A("s_lshr_b32 s23, s21, 1\ns_lshl_b32 s23, s23, 2\ns_lshr_b32 s24, s22, 3\ns_add_u32 s23, s23, s24")
    A("s_and_b32 s25, s21, 1\ns_lshl_b32 s25, s25, 3\ns_and_b32 s26, s22, 7\ns_add_u32 s25, s25, s26")
    if rot: A("s_add_u32 s30, s24, s26")
    else: A("s_mov_b32 s30, 0")
    A("s_mul_i32 s31, s23, 196608\ns_mul_i32 s60, s20, 49152\ns_add_u32 s31, s31, s60")
    A(f"s_mul_i32 s32, s25, 147456\ns_add_u32 s32, s32, {8<<20}")
    for k in range(3):
        A(f"s_add_u32 s60, s20, {4*k}\ns_mul_i32 s61, s60, 43\ns_lshr_b32 s61, s61, 7")
        A(f"s_mul_i32 s62, s61, 3\ns_sub_u32 s62, s60, s62")
        A(f"s_add_u32 s{33+k}, s61, s30")
        A(f"s_mul_i32 s62, s62, 49152\ns_add_u32 s{36+k}, s62, s32")
    A("s_lshl_b32 s27, s20, 10")
    A("s_waitcnt lgkmcnt(0)")
    A("s_mov_b32 s8, s4\ns_mov_b32 s9, s5\ns_mov_b32 s10, 0x20000000\ns_mov_b32 s11, 0x20000")
    A("v_lshlrev_b32 v2, 4, v2")
    for i in range(16,120): A(f"v_mov_b32 v{i}, 0")
    ops=[]
    def hload(p):
        A(f"s_add_u32 s60, s30, {p}\ns_cmp_ge_u32 s60, 48\ns_cselect_b32 s61, 48, 0\ns_sub_u32 s60, s60, s61\ns_lshl_b32 s60, s60, 10\ns_add_u32 s60, s60, s31")
        A(f"buffer_load_dwordx4 a[{4*p}:{4*p+3}], v2, s[8:11], s60 offen {flags}")
        ops.append(p//4)
    def wload(g,k):
        A(f"s_add_u32 s60, s{33+k}, {4*g}\ns_cmp_ge_u32 s60, 48\ns_cselect_b32 s61, 48, 0\ns_sub_u32 s60, s60, s61\ns_lshl_b32 s60, s60, 10\ns_add_u32 s60, s60, s{36+k}")
        A(f"s_add_u32 m0, s27, {g*12288+k*4096}\ns_nop 0")
        A(f"buffer_load_dwordx4 v2, s[8:11], s60 offen {flags} lds")
        ops.append(g)
    def items(tau):
        it=[]
        g=tau+d
        if 0<=g<12:
            for k in range(3):
                if not(delta>0 and k==0): it.append(("w",g,k))
            if withh:
                for q in range(4):
                    p=4*g+q
                    if not(delta>0 and p%8==0): it.append(("h",p))
        ge=tau+d+delta
        if delta>0 and 0<=ge<12:
            it.append(("w",ge,0))
            if withh:
                for q in range(4):
                    p=4*ge+q
                    if p%8==0: it.append(("h",p))
        return it
    def do(x):
        if x[0]=="w": wload(x[1],x[2])
        else: hload(x[1])
    def wait(g):
        idx=[i for i,t in enumerate(ops) if t==g]
        n=len(ops)-1-idx[-1]
        A(f"s_waitcnt vmcnt({min(n,63)})")
    A("s_barrier")
    A("s_memtime s[70:71]")
    A("s_waitcnt lgkmcnt(0)")
    if warm:
        A("s_sub_u32 s40, s23, s24\ns_mul_i32 s40, s40, 196608")
        A("s_sub_u32 s41, s25, s26\ns_mul_i32 s41, s41, 147456")
        A(f"s_add_u32 s41, s41, {8<<20}")
        A("s_lshl_b32 s42, s22, 2\ns_add_u32 s42, s42, s20")
        A("s_lshr_b32 s43, s42, 3\ns_mul_i32 s43, s43, 49152\ns_and_b32 s44, s42, 7\ns_lshl_b32 s44, s44, 10\ns_add_u32 s43, s43, s44\ns_add_u32 s43, s43, s40")
        nH = 6 if withh else 0
        seq=[]
        for i in range(9):
            if i<nH: seq.append(("h",i))
            seq.append(("w",i))
        for k,i in seq:
            if k=="h":
                A(f"s_add_u32 s45, s43, {i*8192}")
            else:
                A(f"s_add_u32 s45, s42, {i*128}\ns_mul_i32 s46, s45, 2731\ns_lshr_b32 s46, s46, 16\ns_mul_i32 s47, s46, 24\ns_sub_u32 s47, s45, s47")
                A("s_mul_i32 s47, s47, 49152\ns_lshl_b32 s46, s46, 10\ns_add_u32 s45, s47, s46\ns_add_u32 s45, s45, s41")
            A(f"buffer_load_dwordx4 v[120:123], v2, s[8:11], s45 offen {flags}")
            ops.append(-1)
    for tau in range(-d-delta,0):
        for x in items(tau): do(x)
    for tau in range(12):
        wait(tau); A("s_barrier")
        if tau==0: A("s_memtime s[72:73]")
        it=items(tau)
        n=len(it)
        pos=[int((i+0.5)*nmf/n) for i in range(n)] if n else []
        for m in range(nmf):
            acc=16+16*(m%3)
            A(f"v_mfma_f32_32x32x16_bf16 v[{acc}:{acc+15}], v[112:115], v[116:119], v[{acc}:{acc+15}]")
            while pos and pos[0]==m:
                pos.pop(0); do(it.pop(0))
    A("s_memtime s[74:75]")
    A("s_waitcnt vmcnt(0) lgkmcnt(0)")
    A("s_barrier")
    A("s_memtime s[76:77]")
    A("s_waitcnt lgkmcnt(0)")
    A(f"s_sub_u32 s50, s72, s70\ns_sub_u32 s51, s74, s70\ns_sub_u32 s52, s76, s70")
    A("v_mov_b32 v4, s50\nv_mov_b32 v5, s51\nv_mov_b32 v6, s52\nv_mov_b32 v7, 0")
    A("s_lshl_b32 s3, s2, 5\nv_mov_b32 v12, s3")
    A("v_cmp_eq_u32 vcc, 0, v0\ns_and_saveexec_b64 s[14:15], vcc")
    A(f"s_cbranch_execz {name}_done")
    A("global_store_dwordx4 v12, v[4:7], s[6:7]")
    A(f"{name}_done:\ns_endpgm")
    return "\n".join(L)+desc(name,512,256)
cfgs=[]
for withh in (True,False):
    for d,delta,rot,warm in ((3,0,0,0),(2,0,0,1),(3,0,0,1),(4,0,0,1)):
        cfgs.append((f"lead_h{int(withh)}_d{d}_e{delta}_r{rot}_w{warm}_kernel",d,delta,rot,withh,warm))
out=[kern(*c) for c in cfgs]
hdr="".join(f"; @launch kernel={c[0]} grid=(256,1,1) block=(256,1,1) lds=163840\n" for c in cfgs)
open("lead.s","w").write(hdr+'.amdgcn_target "amdgcn-amd-amdhsa--gfx950"\n.text\n'+"\n".join(out))
open("lead_names.txt","w").write("\n".join(c[0] for c in cfgs))
def writer(name, flags):
    L=[];A=L.append
    A(f".globl {name}\n.p2align 8\n.type {name},@function\n{name}:")
    A("s_load_dwordx2 s[4:5], s[0:1], 0")
    A("s_waitcnt lgkmcnt(0)")
    A("s_mov_b32 s8, s4\ns_mov_b32 s9, s5\ns_mov_b32 s10, 0x20000000\ns_mov_b32 s11, 0x20000")
    A("v_lshlrev_b32 v2, 4, v0")
    A("s_mul_i32 s20, s2, 12288")
    A(f"s_mul_i32 s21, s2, 9216\ns_add_u32 s21, s21, {8<<20}")
    A("v_mov_b32 v4, v0\nv_mov_b32 v5, v0\nv_mov_b32 v6, v0\nv_mov_b32 v7, v0")
    for i in range(3):
        A(f"buffer_store_dwordx4 v[4:7], v2, s[8:11], s20 offen {flags}\ns_add_u32 s20, s20, 4096")
    for i in range(3):
        A(f"buffer_store_dwordx4 v[4:7], v2, s[8:11], s21 offen {flags}\ns_add_u32 s21, s21, 3072")
    A("s_waitcnt vmcnt(0)\ns_endpgm")
    return "\n".join(L)+desc(name,512,256)
w=[writer("wr_sc1_kernel","sc1"),writer("wr_pl_kernel",""),writer("wr_nt_kernel","nt"),writer("wr_sc01_kernel","sc0 sc1")]
s=open("lead.s").read()
s="".join(f"; @launch kernel={n} grid=(256,1,1) block=(256,1,1) lds=0\n" for n in ("wr_sc1_kernel","wr_pl_kernel","wr_nt_kernel","wr_sc01_kernel"))+s+"\n".join(w)
open("lead.s","w").write(s)
```
